```python
import torch

def _softmax(x, axis=-1):
    return torch.softmax(x, dim=axis)
def _gelu(x):
    return torch.nn.functional.gelu(x, approximate="tanh")
def _silu(x):
    return torch.nn.functional.silu(x)
def _sigmoid(x):
    return torch.sigmoid(x)
def _layernorm(x, axis=-1, eps=1e-5):
    m = x.mean(dim=axis, keepdim=True)
    v = x.var(dim=axis, keepdim=True, unbiased=False)
    return (x - m) / torch.sqrt(v + eps)
def _scatter_add(tgt, idx, src, axis=0):
    return tgt.clone().index_add_(axis, idx, src)
def _segment_sum(src, seg, n):
    out = torch.zeros((n,) + src.shape[1:], dtype=src.dtype)
    return out.index_add_(0, seg, src)
def _pad(x, pw):
    flat = tuple(v for pair in reversed(pw) for v in pair)
    return torch.nn.functional.pad(x, flat)

kernel_name = 'sequential_preLN__gqa_block_cached__dense_activation_gelu__decode'

def setup_inputs():

    _w = (lambda a: (lambda t: t.to(torch.bfloat16) if t.is_floating_point() else t)(torch.as_tensor(a)))
    def _A_setup():
        B, Sq, D = 2, 1, 576
        Hq, Hkv, Sk, Dh = 32, 16, 32768, 128
        assert Hq % Hkv == 0, (Hq, Hkv)
        return {
            "x": _w((lambda *s: torch.randn(*s, dtype=torch.bfloat16) * 0.1)(B, Sq, D)),
            "k_cache": _w((lambda *s: torch.randn(*s, dtype=torch.bfloat16) * 1.6)(B, Hkv, Sk, Dh)),
            "v_cache": _w((lambda *s: torch.randn(*s, dtype=torch.bfloat16) * 1.6)(B, Hkv, Sk, Dh)),
            "wq": _w((lambda *s: torch.randn(*s, dtype=torch.bfloat16) * 1.6)(D, Hq * Dh) * (D ** -0.5)),
            "wo": _w((lambda *s: torch.randn(*s, dtype=torch.bfloat16) * 1.6)(Hq * Dh, D) * ((Hq * Dh) ** -0.5)),
        }
    _A_in = _A_setup()

    def _B_setup():
        B, S, D, F = 2, 1, 576, 4608
        return {
            "x": _w((lambda *s: torch.randn(*s, dtype=torch.bfloat16) * 0.1)(B, S, D)),
            "w1": _w((lambda *s: torch.randn(*s, dtype=torch.bfloat16) * 3.2)(D, F) * (D ** -0.5)),
            "b1": _w((lambda *s: torch.randn(*s, dtype=torch.bfloat16) * 3.2)(F) * 0.01),
            "w2": _w((lambda *s: torch.randn(*s, dtype=torch.bfloat16) * 3.2)(F, D) * (F ** -0.5)),
            "b2": _w((lambda *s: torch.randn(*s, dtype=torch.bfloat16) * 3.2)(D) * 0.01),
        }
    _B_in = _B_setup()

    return {
        "A_x": _A_in["x"],
        "A_k_cache": _A_in["k_cache"],
        "A_v_cache": _A_in["v_cache"],
        "A_wq": _A_in["wq"],
        "A_wo": _A_in["wo"],
        "B_x": _B_in["x"],
        "B_w1": _B_in["w1"],
        "B_b1": _B_in["b1"],
        "B_w2": _B_in["w2"],
        "B_b2": _B_in["b2"],
    }

def reference(A_x, A_k_cache, A_v_cache, A_wq, A_wo, B_x, B_w1, B_b1, B_w2, B_b2):
    def _A_ref(x, k_cache, v_cache, wq, wo):
        B, Sq, D = x.shape
        Hq, Dh = 32, 128
        Hkv = k_cache.shape[1]
        rep = Hq // Hkv
        q = (lambda x, *d: x.permute(*d))((x @ wq).reshape(B, Sq, Hq, Dh), 0, 2, 1, 3)
        k = (lambda x, n, axis: torch.repeat_interleave(x, n, dim=axis))(k_cache, rep, axis=1)
        v = (lambda x, n, axis: torch.repeat_interleave(x, n, dim=axis))(v_cache, rep, axis=1)
        scores = torch.einsum("bhqd,bhkd->bhqk", q, k) * (Dh ** -0.5)
        p = _softmax(scores, axis=-1)
        o = torch.einsum("bhqk,bhkd->bhqd", p, v)
        return (lambda x, *d: x.permute(*d))(o, 0, 2, 1, 3).reshape(B, Sq, Hq * Dh) @ wo

    def _B_ref(x, w1, b1, w2, b2):
        h = torch.einsum("bsd,df->bsf", x, w1) + b1
        h = _gelu(h)
        return torch.einsum("bsf,fd->bsd", h, w2) + b2

    x = A_x
    h = x + _A_ref(_layernorm(x, axis=-1), A_k_cache, A_v_cache, A_wq, A_wo)
    h2 = h + _B_ref(_layernorm(h, axis=-1), B_w1, B_b1, B_w2, B_b2)
    return h2
```

```python
import sys, struct
NAME = "sequential_preLN__gqa_block_cached__dense_activation_gelu__decode"
QBOX, H1O, H1M, H2, H3, H4, STAMP = 0x0, 0x40000, 0x80000, 0x100000, 0x240000, 0x280000, 0x10000000
L_XN, L_Q, L_CNT, L_ACC, L_ML, L_W1 = 0x0, 0xA00, 0xC00, 0x1000, 0x3000, 0x4000
def f2u(x): return "0x%08x" % struct.unpack("<I", struct.pack("<f", x))[0]
SPIN = 1 << 18

def add_pads(L, start, end, spacing):
    import subprocess, re, os
    open("_p.s", "w").write("\n".join(x for x in L if "L_pad0" not in x) + "\n")
    subprocess.run(["clang", "-x", "assembler", "-target", "amdgcn-amd-amdhsa", "-mcpu=gfx950", "-c", "_p.s", "-o", "_p.o"], check=True)
    d = subprocess.run(["llvm-objdump", "-d", "_p.o"], capture_output=True, text=True).stdout
    sizes = [4*len(m.group(1).split()) for m in re.finditer(r"// [0-9A-F]+: ((?:[0-9A-F]{8} ?)+)", d)]
    isins = lambda x: x and not x.startswith((";", ".")) and not x.endswith(":")
    out = []; k = 0; inreg = False; dist = 0; n = 0
    for x in L:
        if x == start:
            inreg = True; out.append(x); out.append("PAD"); dist = 4; continue
        if x == end and inreg:
            inreg = False; out.append("PAD")
        if isins(x) and "L_pad0" not in x:
            sz = sizes[k]; k += 1
            if inreg:
                if dist + sz > spacing: out.append("PAD"); dist = 4
                dist += sz
        out.append(x)
    tot = out.count("PAD"); res = []
    for x in out:
        if x == "PAD":
            res.append(f"L_pad{n}:"); n += 1
            res.append(f"s_cbranch_execz L_pad{n}" if n < tot else "s_cbranch_execz L_warmret")
        else: res.append(x)
    sys.stderr.write(f"pads {tot}\n")
    return res

def gen(NBUF=6, stamps=False, wlate=0, pace=-1, seq=0, slp=0, qslp=0, noclr=0, stpol=0, nopf=0, warm=0, header=""):
    L = []
    def A(s): L.extend(x.strip() for x in s.strip().split("\n"))
    nlab = [0]
    def lab(p):
        nlab[0] += 1; return f"L_{p}{nlab[0]}"
    def srd(d, base, size):
        A(f"s_mov_b32 s{d}, s{base}\ns_and_b32 s{d+1}, s{base+1}, 0xffff\ns_mov_b32 s{d+2}, {size}\ns_mov_b32 s{d+3}, 0x20000")
    def stamp(i):
        if not stamps: return
        A(f"""s_memrealtime s[90:91]
        s_waitcnt lgkmcnt(0)
        v_writelane_b32 v63, s90, {i}
        s_bitset1_b32 s93, {i}""")
    def endp():
        if stamps: A("s_branch L_end")
        else: A("s_endpgm")
    def stamp0(i):
        if not stamps: return
        l = lab("st"); A(f"s_cmp_lg_u32 s3, 0\ns_cbranch_scc1 {l}"); stamp(i); A(f"{l}:")
    def dpp(op, d, a, b, ctl): A(f"{op}_dpp v{d}, v{a}, v{b} {ctl} row_mask:0xf bank_mask:0xf")
    def swapred(op, regs, tmp, which):
        for i, r in enumerate(regs): A(f"v_mov_b32 v{tmp+i}, v{r}")
        A("s_nop 1")
        for i, r in enumerate(regs): A(f"v_permlane{which}_swap_b32 v{r}, v{tmp+i}")
        for i, r in enumerate(regs): A(f"{op} v{r}, v{r}, v{tmp+i}")
    def dppred(op, regs, ctls):
        for c in ctls:
            if len(regs) < 3: A("s_nop 1")
            for r in regs: dpp(op, r, r, r, c)
    def anysent(regs, t):
        regs = list(regs)
        A(f"v_max_u32 v{t}, v{regs[0]}, v{regs[1]}"); regs = regs[2:]
        while len(regs) >= 2:
            A(f"v_max3_u32 v{t}, v{t}, v{regs[0]}, v{regs[1]}"); regs = regs[2:]
        if regs: A(f"v_max_u32 v{t}, v{t}, v{regs[0]}")
        A(f"v_cmp_eq_u32 vcc, -1, v{t}")
    def poll(loads, regs, t):
        l0, l1 = lab("poll"), lab("done")
        A(f"s_mov_b32 s70, {SPIN}\n{l0}:")
        loads()
        A("s_waitcnt vmcnt(0)")
        anysent(regs, t)
        A(f"s_cbranch_vccz {l1}")
        if slp: A(f"s_sleep {slp}")
        A(f"s_sub_u32 s70, s70, 1\ns_cbranch_scc0 {l0}\n{l1}:")
    def bmask(dst, src):
        for r in range(4): A(f"v_and_b32 v{dst+r}, v{6+r}, v{src}")
    def MF(d, a, b, c=None):
        cs = f"v[{d}:{d+3}]" if c is None else c
        A(f"v_mfma_f32_16x16x32_bf16 v[{d}:{d+3}], v[{a}:{a+3}], v[{b}:{b+3}], {cs}")
    def lnstats(vals, t):
        A(f"v_add_f32 v{t}, v{vals[0]}, v{vals[1]}")
        for v in vals[2:]: A(f"v_add_f32 v{t}, v{t}, v{v}")
        dppred("v_add_f32", [t], ["row_ror:8", "row_ror:4", "row_ror:2", "row_ror:1"])
        swapred("v_add_f32", [t], t+1, 16)
        A(f"v_mul_f32 v{t}, {f2u(1/576)}, v{t}")
        for v in vals: A(f"v_sub_f32 v{v}, v{v}, v{t}")
        A(f"v_mul_f32 v{t}, v{vals[0]}, v{vals[0]}")
        for v in vals[1:]: A(f"v_fmac_f32 v{t}, v{v}, v{v}")
        dppred("v_add_f32", [t], ["row_ror:8", "row_ror:4", "row_ror:2", "row_ror:1"])
        swapred("v_add_f32", [t], t+1, 16)
        A(f"v_mov_b32 v{t+1}, {f2u(1e-5)}\nv_fmac_f32 v{t+1}, {f2u(1/576)}, v{t}\nv_rsq_f32 v{t}, v{t+1}\ns_nop 0")
        for v in vals: A(f"v_mul_f32 v{v}, v{v}, v{t}")
    SL = 64
    NT = 256
    def tile_loads(k, sreg):
        b = SL + 32*k
        for t in range(4): A(f"buffer_load_dwordx4 v[{b+4*t}:{b+4*t+3}], v4, s[4:7], s{sreg} offen offset:{64*t} nt")
        for t in range(4): A(f"buffer_load_dwordx4 v[{b+16+4*t}:{b+16+4*t+3}], v5, s[8:11], s{sreg} offen offset:{256*t} nt")
    def prefetch(paced=False):
        A("s_lshl_b32 s67, s3, 12\ns_add_u32 s67, s67, s66")
        for k in range(NBUF):
            tile_loads(k, 67)
            if k + 1 < NBUF:
                A("s_add_u32 s67, s67, 0x8000")
                if paced and pace >= 0: A(f"s_waitcnt vmcnt({pace})")
    WO, W1, W2, B1 = 64, 80, 104, 136
    def load_wo():
        l = lab("wo"); A(f"s_cmp_gt_u32 s3, 4\ns_cbranch_scc1 {l}")
        srd(20, 44, 4096*1152)
        A(f"""s_lshl_b32 s67, s62, 8
        s_lshl_b32 s68, s63, 7
        s_add_u32 s67, s67, s68
        s_add_u32 s67, s67, s64
        s_mul_i32 s67, s67, 1152
        s_lshl_b32 s68, s3, 8
        s_add_u32 s67, s67, s68
        v_mul_u32_u24 v48, {32*1152}, v3
        v_lshl_add_u32 v48, v2, 4, v48""")
        for t in range(4):
            A(f"buffer_load_dwordx4 v[{WO+4*t}:{WO+4*t+3}], v48, s[20:23], s67 offen nt")
            if t < 3: A("s_add_u32 s67, s67, 9216")
        A(f"{l}:")
    def load_mlp():
        l = lab("mlp"); l2 = lab("mlp")
        A(f"s_cmp_ge_u32 s2, 144\ns_cbranch_scc1 {l}\ns_cmp_gt_u32 s3, 5\ns_cbranch_scc1 {l}")
        srd(24, 48, 576*9216)
        A(f"""s_mul_i32 s67, s3, {96*9216}
        s_lshl_b32 s68, s2, 6
        s_add_u32 s67, s67, s68
        v_mul_u32_u24 v49, {8*9216}, v3
        v_lshl_add_u32 v49, v2, 2, v49""")
        for i in range(24):
            A(f"buffer_load_dword v{W1+i}, v49, s[24:27], s67 offen nt")
            if i < 23: A(f"s_add_u32 s67, s67, {9216 if i % 8 != 7 else 25*9216}")
        A(f"s_cmp_gt_u32 s3, 4\ns_cbranch_scc1 {l}")
        srd(28, 52, 4608*1152)
        A(f"""s_mul_i32 s67, s2, {32*1152}
        s_lshl_b32 s68, s3, 8
        s_add_u32 s67, s67, s68
        v_mul_u32_u24 v50, {8*1152}, v3
        v_lshl_add_u32 v50, v2, 4, v50""")
        for t in range(8):
            A(f"buffer_load_dwordx4 v[{W2+4*t}:{W2+4*t+3}], v50, s[28:31], s67 offen offset:{1152*(t%4)} nt")
            if t == 3: A("s_add_u32 s67, s67, 4608")
        srd(24, 50, 4608*2)
        A(f"""v_and_b32 v51, 7, v2
        v_lshl_add_u32 v51, v3, 3, v51
        v_lshlrev_b32 v51, 1, v51
        s_lshl_b32 s67, s2, 6
        buffer_load_ushort v{B1}, v51, s[24:27], s67 offen""")
        A(f"{l}:")
    def quad_store(d, box):
        A(f"""s_lshl_b32 s67, s3, 18
        s_lshl_b32 s68, s2, 5
        s_add_u32 s67, s67, s68
        s_add_u32 s67, s67, {box}
        s_cmp_eq_u32 s3, 4
        s_cselect_b32 exec_hi, 0, -1
        buffer_store_dwordx4 v[{d}:{d+3}], v52, s[12:15], s67 offen sc1
        s_mov_b32 exec_hi, -1""")
    def quad_reduce(d):
        dppred("v_add_f32", [d, d+1, d+2, d+3], ["quad_perm:[2,3,0,1]", "row_ror:4", "row_ror:8"])
        swapred("v_add_f32", [d, d+1, d+2, d+3], 44, 16)
        swapred("v_add_f32", [d, d+1, d+2, d+3], 44, 32)
        A(f"""v_cndmask_b32 v{d}, v{d}, v{d+1}, s[72:73]
        v_cndmask_b32 v{d+2}, v{d+2}, v{d+3}, s[72:73]
        v_cndmask_b32 v{d}, v{d}, v{d+2}, s[74:75]""")
    def rbf(r, t=None):
        A(f"v_cvt_pk_bf16_f32 v{r}, v{r}, v{r}\nv_and_b32 v{r}, 0xffff0000, v{r}")

    A(header)
    A("; @launch grid=(256,1,1) block=(512,1,1) lds=90000")
    A('.amdgcn_target "amdgcn-amd-amdhsa--gfx950"\n.text')
    A(f".globl {NAME}_kernel\n.p2align 8\n.type {NAME}_kernel,@function\n{NAME}_kernel:")
    A(f"""s_cmp_ge_u32 s2, 256
    s_cbranch_scc1 L_exit
    s_mov_b32 s93, 0
    s_load_dwordx16 s[36:51], s[0:1], 0
    s_load_dwordx8 s[52:59], s[0:1], 64
    s_load_dwordx2 s[60:61], s[0:1], 96
    v_lshrrev_b32 v48, 6, v0
    v_and_b32 v1, 63, v0
    v_readfirstlane_b32 s3, v48
    v_and_b32 v2, 15, v1
    v_lshrrev_b32 v3, 4, v1
    v_lshlrev_b32 v4, 8, v2
    v_lshl_add_u32 v4, v3, 4, v4
    v_lshlrev_b32 v5, 4, v2
    v_lshl_add_u32 v5, v3, 10, v5
    v_mov_b32 v53, 0
    v_mov_b32 v57, 0
    v_mov_b32 v61, 0
    s_lshr_b32 s62, s2, 3
    s_and_b32 s62, s62, 15
    s_lshr_b32 s63, s2, 7
    s_and_b32 s64, s2, 7
    s_lshl_b32 s65, s63, 3
    s_add_u32 s65, s65, s64
    s_lshl_b32 s66, s2, 20
    s_mov_b32 s76, {f2u(1.4426950408889634 * 128**-0.5)}
    s_mov_b32 s77, {f2u(-1.4426950408889634 * 128**-0.5)}
    s_waitcnt lgkmcnt(0)""")
    srd(4, 38, 0x10000000); srd(8, 40, 0x10000000); srd(12, 60, 0x40000000); srd(16, 58, 256)
    A("s_cmp_eq_u32 s3, 0\ns_cbranch_scc1 L_qphase")
    if nopf: A("s_barrier")
    prefetch(True)
    A("L_masks:")
    A("""v_and_b32 v48, 1, v2
    v_lshlrev_b32 v48, 4, v48
    v_mov_b32 v49, 0xffff
    v_lshlrev_b32 v49, v48, v49
    v_bfe_u32 v48, v2, 1, 2""")
    for r in range(4): A(f"v_cmp_eq_u32 vcc, {r}, v48\ns_nop 1\nv_cndmask_b32 v{6+r}, 0, v49, vcc")
    A("s_cmp_eq_u32 s3, 0\ns_cbranch_scc1 L_qphase2\ns_barrier\ns_branch L_main")
    A("L_qphase:")
    stamp(0)
    srd(20, 36, 2304); srd(24, 42, 576*8192)
    XQ = 200
    A(f"""v_lshrrev_b32 v48, 5, v1
    v_and_b32 v49, 31, v1
    v_mul_u32_u24 v50, 1152, v48
    v_lshl_add_u32 v51, v49, 4, v50
    v_lshl_add_u32 v50, v49, 2, v50
    buffer_load_dwordx4 v[{XQ}:{XQ+3}], v51, s[20:23], 0 offen
    buffer_load_dwordx4 v[{XQ+4}:{XQ+7}], v51, s[20:23], 0 offen offset:512
    buffer_load_dword v{XQ+8}, v50, s[20:23], 0 offen offset:1024
    s_lshl_b32 s67, s62, 1
    s_add_u32 s67, s67, s63
    s_lshl_b32 s67, s67, 8
    s_mul_i32 s68, s64, {72*8192}
    s_add_u32 s67, s67, s68
    v_mul_u32_u24 v52, {18*8192}, v3
    v_lshl_add_u32 v52, v2, 4, v52""")
    for t in range(18):
        A(f"buffer_load_dwordx4 v[{SL+4*t}:{SL+4*t+3}], v52, s[24:27], s67 offen nt")
        if t < 17: A("s_add_u32 s67, s67, 8192")
    if noclr:
        stamp(11); A("v_lshlrev_b32 v53, 4, v1\ns_waitcnt vmcnt(18)"); stamp(12); A("s_branch L_masks")
    A(f"""v_mov_b32 v56, -1
    v_mov_b32 v57, -1
    v_mov_b32 v58, -1
    v_mov_b32 v59, -1
    v_lshlrev_b32 v53, 4, v1
    s_lshl_b32 s68, s62, 4
    s_add_u32 s68, s68, s65
    s_lshl_b32 s67, s68, 10
    s_add_u32 s67, s67, {H1O}
    buffer_store_dwordx4 v[56:59], v53, s[12:15], s67 offen sc1
    s_lshl_b32 s67, s68, 7
    s_add_u32 s67, s67, {H1M}
    s_mov_b64 exec, 0xff
    buffer_store_dwordx4 v[56:59], v53, s[12:15], s67 offen sc1
    s_mov_b64 exec, -1
    s_cmp_ge_u32 s2, 144
    s_cbranch_scc1 L_noclr
    s_lshl_b32 s68, s2, 13
    s_add_u32 s67, s68, {H2}""")
    for u in range(8):
        A(f"buffer_store_dwordx4 v[56:59], v53, s[12:15], s67 offen offset:{1024*(u%4)} sc1")
        if u == 3: A("s_add_u32 s67, s67, 4096")
    A(f"s_add_u32 s67, s68, {H4}")
    for u in range(5):
        A(f"buffer_store_dwordx4 v[56:59], v53, s[12:15], s67 offen offset:{1024*(u%4)} sc1")
        if u == 3: A("s_add_u32 s67, s67, 4096")
    A(f"""s_lshl_b32 s67, s2, 5
    s_add_u32 s67, s67, {H3}
    s_mov_b64 exec, 3
    buffer_store_dwordx4 v[56:59], v53, s[12:15], s67 offen sc1
    s_mov_b64 exec, -1
    s_waitcnt vmcnt(34)
    s_branch L_masks
    L_noclr:
    s_waitcnt vmcnt(20)
    s_branch L_masks
    L_qphase2:""")
    XF = 210
    for i in range(9): A(f"v_lshlrev_b32 v{XF+2*i}, 16, v{XQ+i}\nv_and_b32 v{XF+2*i+1}, 0xffff0000, v{XQ+i}")
    lnstats(list(range(XF, XF+18)), 40)
    for i in range(9): A(f"v_cvt_pk_bf16_f32 v{XQ+i}, v{XF+2*i}, v{XF+2*i+1}")
    A(f"""ds_write_b128 v51, v[{XQ}:{XQ+3}] offset:{L_XN}
    ds_write_b128 v51, v[{XQ+4}:{XQ+7}] offset:{L_XN+512}
    ds_write_b32 v50, v{XQ+8} offset:{L_XN+1024}
    v_lshrrev_b32 v48, 3, v2
    v_mul_u32_u24 v48, 1152, v48
    v_mul_u32_u24 v49, 36, v3
    s_mul_i32 s67, s64, 144
    v_add3_u32 v48, v48, v49, s67
    v_mov_b32 v49, {8*NBUF}
    v_mov_b32 v54, 0
    ds_write_b32 v54, v49 offset:{L_CNT}
    s_waitcnt lgkmcnt(0)""")
    stamp(13)
    for i in range(9): A(f"ds_read_b32 v{XQ+i}, v48 offset:{L_XN+4*i}")
    A("s_mov_b32 s68, 0x01000100\ns_mov_b32 s69, 0x03020302\ns_waitcnt vmcnt(0) lgkmcnt(0)")
    stamp(8)
    if nopf: A("s_barrier")
    for t in range(18):
        bs = 40 + 4*(t % 2)
        A(f"v_perm_b32 v55, v{XQ+t//2}, v{XQ+t//2}, s{68+t%2}")
        bmask(bs, 55)
        if t > 0: MF(26, SL+4*(t-1), 40+4*((t-1) % 2), "0" if t == 1 else None)
    A("s_nop 1"); MF(26, SL+68, 44)
    A(f"""v_lshrrev_b32 v48, 3, v2
    v_lshlrev_b32 v48, 13, v48
    v_and_b32 v49, 7, v2
    v_lshl_add_u32 v49, v3, 3, v49
    v_lshl_add_u32 v48, v49, 4, v48
    s_lshl_b32 s67, s62, 14
    s_lshl_b32 s68, s63, 12
    s_add_u32 s67, s67, s68
    s_lshl_b32 s68, s64, 9
    s_add_u32 s67, s67, s68
    s_nop 1
    buffer_store_dwordx4 v[26:29], v48, s[12:15], s67 offen sc1
    v_mov_b32 v49, 1
    s_lshl_b32 s67, s62, 4
    s_waitcnt vmcnt(0)""")
    stamp(9)
    A(f"""s_mov_b64 exec, 1
    buffer_atomic_add v49, v54, s[16:19], s67 offen sc1
    s_mov_b64 exec, 0xffff
    s_mov_b32 s70, {SPIN}
    L_qpoll:
    buffer_load_dword v49, v53, s[16:19], 0 offen sc1
    s_waitcnt vmcnt(0)
    v_cmp_ne_u32 vcc, 16, v49
    s_cbranch_vccz L_qgot
    {"s_sleep %d" % qslp if qslp else ""}
    s_sub_u32 s70, s70, 1
    s_cbranch_scc0 L_qpoll
    L_qgot:
    s_mov_b64 exec, -1""")
    stamp(10)
    A(f"""
    v_lshrrev_b32 v48, 5, v1
    v_and_b32 v49, 31, v1
    v_lshlrev_b32 v50, 12, v48
    v_lshl_add_u32 v50, v49, 4, v50
    s_lshl_b32 s67, s62, 14
    s_lshl_b32 s68, s63, 13
    s_add_u32 s67, s67, s68""")
    for u in range(8): A(f"buffer_load_dwordx4 v[{SL+4*u}:{SL+4*u+3}], v50, s[12:15], s67 offen offset:{512*u} sc1")
    A(f"""v_lshrrev_b32 v51, 3, v49
    v_lshlrev_b32 v51, 6, v51
    v_and_b32 v49, 7, v49
    v_lshl_add_u32 v51, v49, 1, v51
    v_lshl_add_u32 v51, v48, 8, v51
    s_waitcnt vmcnt(0)""")
    for u in range(1, 8):
        for r in range(4): A(f"v_add_f32 v{SL+r}, v{SL+r}, v{SL+4*u+r}")
    for r in range(4): A(f"v_cvt_pk_bf16_f32 v{SL+r}, v{SL+r}, v{SL+r}")
    for r in range(4): A(f"ds_write_b16 v51, v{SL+r} offset:{L_Q+16*r}")
    A("s_waitcnt lgkmcnt(0)\ns_barrier")
    stamp(1)
    prefetch()
    A(f"""L_main:
    v_lshrrev_b32 v48, 3, v2
    v_lshlrev_b32 v48, 8, v48
    v_lshl_add_u32 v48, v3, 4, v48""")
    for t in range(4): A(f"ds_read_b128 v[{10+4*t}:{13+4*t}], v48 offset:{L_Q+64*t}")
    A(f"""v_mov_b32 v26, 0
    v_mov_b32 v27, 0
    v_mov_b32 v28, 0
    v_mov_b32 v29, 0
    v_mov_b32 v30, 0xff800000
    v_mov_b32 v31, 0
    v_mov_b32 v52, {L_CNT}
    v_mov_b32 v53, 1
    s_mov_b32 s71, {NBUF}
    s_waitcnt lgkmcnt(0)""")
    if warm: A("s_cmp_lg_u32 s3, 7\ns_cbranch_scc1 L_loop\ns_mov_b64 exec, 0\ns_branch L_pad0\nL_warmret:\ns_mov_b64 exec, -1")
    A("L_loop:")
    for k in range(NBUF):
        b = SL + 32*k
        A(f"s_waitcnt vmcnt({8*(NBUF-1)})")
        for t in range(4): MF(32, b+4*t, 10+4*t, "0" if t == 0 else None)
        A("""s_mov_b64 exec, 1
        ds_add_rtn_u32 v54, v52, v53
        s_mov_b64 exec, -1
        s_nop 4
        v_max3_f32 v36, v32, v33, v34
        v_max_f32 v36, v36, v35""")
        swapred("v_max_f32", [36], 37, 16)
        swapred("v_max_f32", [36], 37, 32)
        A("""v_max_f32 v36, v36, v30
        v_mul_f32 v37, s77, v36
        v_fma_f32 v38, v30, s76, v37
        v_fma_f32 v32, v32, s76, v37
        v_exp_f32 v38, v38
        v_exp_f32 v32, v32
        v_fma_f32 v33, v33, s76, v37
        v_fma_f32 v34, v34, s76, v37
        v_fma_f32 v35, v35, s76, v37
        v_mov_b32 v30, v36
        v_cvt_pk_bf16_f32 v39, v32, v32
        v_exp_f32 v33, v33
        v_exp_f32 v34, v34
        v_exp_f32 v35, v35
        v_mul_f32 v26, v26, v38
        v_mul_f32 v27, v27, v38
        v_mul_f32 v28, v28, v38
        v_mul_f32 v29, v29, v38
        v_fma_f32 v31, v31, v38, v32""")
        bmask(40, 39)
        for r in range(1, 4):
            A(f"v_cvt_pk_bf16_f32 v39, v{32+r}, v{32+r}\nv_add_f32 v31, v31, v{32+r}")
            MF(26, b+16+4*(r-1), 40+4*((r-1) % 2))
            bmask(40+4*(r % 2), 39)
        A("s_waitcnt lgkmcnt(0)\nv_readfirstlane_b32 s67, v54")
        MF(26, b+28, 44)
        ls, ln = lab("skip"), lab("next")
        A(f"s_cmp_ge_u32 s67, {NT}\ns_cbranch_scc1 {ls}\ns_lshl_b32 s67, s67, 12\ns_add_u32 s67, s67, s66")
        tile_loads(k, 67)
        A(f"s_branch {ln}" if k + 1 < NBUF else "s_branch L_loop")
        A(f"{ls}:\ns_sub_u32 s71, s71, 1\ns_cmp_eq_u32 s71, 0\ns_cbranch_scc1 L_tail\ns_waitcnt vmcnt(0)")
        A(f"{ln}:" if k + 1 < NBUF else "s_branch L_loop")
    A("L_tail:")
    load_wo()
    if wlate == 0: load_mlp()
    swapred("v_add_f32", [31], 37, 16)
    swapred("v_add_f32", [31], 37, 32)
    A(f"""v_mul_f32 v30, s76, v30
    s_lshl_b32 s67, s3, 9
    v_lshl_add_u32 v54, v1, 3, s67
    v_lshlrev_b32 v55, 1, v54
    ds_write_b64 v54, v[30:31] offset:{L_ML}
    ds_write_b128 v55, v[26:29] offset:{L_ACC}
    v_lshrrev_b32 v52, 1, v1
    v_lshlrev_b32 v52, 13, v52
    v_and_b32 v53, 1, v1
    v_lshl_add_u32 v52, v53, 4, v52
    s_waitcnt lgkmcnt(0)
    s_barrier
    s_cmp_eq_u32 s3, 5
    s_cbranch_scc1 L_w5
    s_cmp_eq_u32 s3, 6
    s_cbranch_scc1 L_w6
    s_cmp_eq_u32 s3, 7
    s_cbranch_scc1 L_end
    s_cmp_lg_u32 s3, 0
    s_cbranch_scc1 L_h1""")
    stamp(2)
    CA, CM = 160, 192
    for w in range(8): A(f"ds_read_b64 v[{CM+2*w}:{CM+2*w+1}], v54 offset:{L_ML+512*w}")
    for w in range(8): A(f"ds_read_b128 v[{CA+4*w}:{CA+4*w+3}], v55 offset:{L_ACC+1024*w}")
    A(f"s_waitcnt lgkmcnt(8)\nv_max3_f32 v30, v{CM}, v{CM+2}, v{CM+4}\nv_max3_f32 v30, v30, v{CM+6}, v{CM+8}\nv_max3_f32 v30, v30, v{CM+10}, v{CM+12}\nv_max_f32 v30, v30, v{CM+14}")
    for w in range(8): A(f"v_sub_f32 v{CM+2*w}, v{CM+2*w}, v30")
    for w in range(8): A(f"v_exp_f32 v{CM+2*w}, v{CM+2*w}")
    A(f"s_waitcnt lgkmcnt(0)\nv_mul_f32 v31, v{CM}, v{CM+1}")
    for r in range(4): A(f"v_mul_f32 v{26+r}, v{CM}, v{CA+r}")
    for w in range(1, 8):
        A(f"v_fmac_f32 v31, v{CM+2*w}, v{CM+2*w+1}")
        for r in range(4): A(f"v_fmac_f32 v{26+r}, v{CM+2*w}, v{CA+4*w+r}")
    A(f"""v_lshlrev_b32 v54, 10, v2
    v_lshl_add_u32 v54, v3, 4, v54
    v_lshlrev_b32 v55, 7, v2
    s_lshl_b32 s67, s62, 14
    s_lshl_b32 s68, s65, 6
    s_add_u32 s67, s67, s68
    s_add_u32 s67, s67, {H1O}
    buffer_store_dwordx4 v[26:29], v54, s[12:15], s67 offen sc1
    s_lshl_b32 s67, s62, 11
    s_lshl_b32 s68, s65, 3
    s_add_u32 s67, s67, s68
    s_add_u32 s67, s67, {H1M}
    s_mov_b64 exec, 0xffff
    buffer_store_dwordx2 v[30:31], v55, s[12:15], s67 offen sc1
    s_mov_b64 exec, -1
    L_h1:
    v_lshlrev_b32 v54, 6, v2
    v_lshl_add_u32 v54, v3, 4, v54
    v_lshlrev_b32 v55, 3, v2
    s_lshl_b32 s68, s62, 4
    s_add_u32 s68, s68, s65
    s_lshl_b32 s67, s68, 10
    s_add_u32 s67, s67, {H1O}
    s_lshl_b32 s68, s68, 7
    s_add_u32 s68, s68, {H1M}""")
    poll(lambda: A("buffer_load_dwordx4 v[32:35], v54, s[12:15], s67 offen sc1\nbuffer_load_dwordx2 v[36:37], v55, s[12:15], s68 offen sc1"), range(32, 38), 38)
    A("v_mov_b32 v38, v36")
    c8 = ["quad_perm:[1,0,3,2]", "quad_perm:[2,3,0,1]", "row_half_mirror"]
    dppred("v_max_f32", [38], c8)
    A("v_sub_f32 v36, v36, v38\nv_exp_f32 v36, v36\ns_nop 0\nv_mul_f32 v37, v37, v36")
    for r in range(4): A(f"v_mul_f32 v{32+r}, v{32+r}, v36")
    dppred("v_add_f32", [37, 32, 33, 34, 35], c8)
    A("v_rcp_f32 v37, v37\ns_nop 0")
    for r in range(4): A(f"v_mul_f32 v{32+r}, v{32+r}, v37")
    for t in range(4):
        A(f"v_cvt_pk_bf16_f32 v39, v{32+t}, v{32+t}")
        bmask(40+4*(t % 2), 39)
        if t > 0: MF(26, WO+4*(t-1), 40+4*((t-1) % 2), "0" if t == 1 else None)
    A("s_nop 1"); MF(26, WO+12, 44)
    A("s_nop 1")
    quad_store(26, H2)
    stamp0(7)
    A("s_cmp_ge_u32 s2, 144\ns_cbranch_scc1 L_end")
    if seq: A("s_barrier")
    if wlate == 1: load_mlp()
    A("L_mlp:\ns_mov_b32 s68, 0x05040100\ns_mov_b32 s69, 0x07060302\ns_waitcnt vmcnt(0)")
    FE = 160
    for i in range(3):
        for a in range(4):
            A(f"v_perm_b32 v{FE+8*i+a}, v{W1+8*i+2*a+1}, v{W1+8*i+2*a}, s68\nv_perm_b32 v{FE+8*i+4+a}, v{W1+8*i+2*a+1}, v{W1+8*i+2*a}, s69")
    A(f"""v_lshrrev_b32 v48, 3, v2
    v_mul_u32_u24 v48, 1152, v48
    v_lshl_add_u32 v48, v3, 4, v48
    s_mul_i32 s67, s3, 192
    v_add_u32 v48, s67, v48
    s_lshl_b32 s67, s3, 11
    v_lshl_add_u32 v49, v1, 4, s67
    v_and_b32 v50, 1, v2
    v_lshlrev_b32 v50, 10, v50
    v_lshl_add_u32 v50, v1, 4, v50
    v_bfe_u32 v51, v2, 1, 2
    v_lshl_add_u32 v50, v51, 2, v50
    s_barrier""")
    for i in range(3): A(f"ds_read_b128 v[{184+4*i}:{187+4*i}], v48 offset:{L_XN+64*i}")
    for i in range(3):
        A(f"s_waitcnt lgkmcnt({2-i})")
        MF(32, FE+8*i, 184+4*i, "0" if i == 0 else None)
        MF(36, FE+8*i+4, 184+4*i, "0" if i == 0 else None)
    A(f"""s_nop 6
    ds_write_b128 v49, v[32:35] offset:{L_W1}
    ds_write_b128 v49, v[36:39] offset:{L_W1+1024}
    s_waitcnt lgkmcnt(0)
    s_barrier
    s_cmp_eq_u32 s3, 5
    s_cbranch_scc1 L_w5b""")
    for w in range(6): A(f"ds_read_b32 v{32+w}, v50 offset:{L_W1+2048*w}")
    A(f"v_lshlrev_b32 v{B1}, 16, v{B1}\ns_waitcnt lgkmcnt(0)\nv_add_f32 v32, v32, v33\nv_add_f32 v34, v34, v35\nv_add_f32 v36, v36, v37\nv_add_f32 v32, v32, v34\nv_add_f32 v32, v32, v36")
    rbf(32); A(f"v_add_f32 v32, v32, v{B1}"); rbf(32)
    k0 = -2*0.7978845608028654*1.4426950408889634
    A(f"""v_mul_f32 v33, v32, v32
    v_mov_b32 v34, {f2u(k0)}
    v_fmac_f32 v34, {f2u(k0*0.044715)}, v33
    v_mul_f32 v33, v34, v32
    v_exp_f32 v33, v33
    s_nop 0
    v_add_f32 v33, 1.0, v33
    v_rcp_f32 v33, v33
    s_nop 0
    v_mul_f32 v32, v32, v33
    v_cvt_pk_bf16_f32 v32, v32, v32
    s_nop 1""")
    for t in range(8):
        A(f"v_mov_b32_dpp v39, v32 row_newbcast:{t} row_mask:0xf bank_mask:0x3\nv_mov_b32_dpp v39, v32 row_newbcast:{8+t} row_mask:0xf bank_mask:0xc")
        bmask(40+4*(t % 2), 39)
        if t > 0: MF(26, W2+4*(t-1), 40+4*((t-1) % 2), "0" if t == 1 else None)
    A("s_nop 1"); MF(26, W2+28, 44)
    A("s_nop 1")
    quad_store(26, H4)
    endp()
    A(f"""L_w5:
    s_cmp_ge_u32 s2, 144
    s_cbranch_scc1 L_end
    s_lshl_b32 s67, s2, 1
    v_add_u32 v53, s67, v53
    v_lshrrev_b32 v54, 4, v53
    v_lshlrev_b32 v54, 5, v54
    v_and_b32 v55, 7, v53
    v_add_u32 v54, v54, v55
    v_bfe_u32 v55, v1, 1, 2
    v_lshl_add_u32 v54, v55, 3, v54
    v_bfe_u32 v56, v53, 3, 1
    v_mul_u32_u24 v56, 576, v56
    v_add_u32 v56, v56, v54
    v_lshlrev_b32 v54, 1, v54
    v_lshlrev_b32 v57, 1, v56
    v_lshlrev_b32 v56, 2, v56
    v_and_b32 v58, 1, v55
    v_cmp_eq_u32 s[72:73], 1, v58
    v_cmp_lt_u32 s[74:75], 1, v55""")
    srd(20, 36, 2304); srd(28, 54, 1152)
    A(f"""buffer_load_ushort v58, v57, s[20:23], 0 offen
    buffer_load_ushort v59, v54, s[28:31], 0 offen
    v_lshlrev_b32 v61, 4, v1
    s_lshl_b32 s78, s2, 13
    s_add_u32 s67, s78, {H2}
    s_add_u32 s68, s67, 4096""")
    G = 200
    if seq: A("s_barrier")
    def ld2():
        for u in range(8): A(f"buffer_load_dwordx4 v[{G+4*u}:{G+4*u+3}], v61, s[12:15], s{67+u//4} offen offset:{1024*(u%4)} sc1")
    poll(ld2, range(G, G+32), 38)
    for u in (4, 2, 1):
        for j in range(4*u): A(f"v_add_f32 v{G+j}, v{G+j}, v{G+4*u+j}")
    quad_reduce(G)
    rbf(G); A(f"v_lshlrev_b32 v58, 16, v58\nv_add_f32 v60, v{G}, v58"); rbf(60)
    A(f"s_mov_b32 s67, {H3}\ns_mov_b64 exec, 0xff\nbuffer_store_dword v60, v56, s[12:15], s67 offen sc1\ns_mov_b64 exec, -1")
    stamp(3)
    if wlate == 1: load_mlp()
    A(f"""s_branch L_mlp
    L_w5b:
    s_add_u32 s67, s78, {H4}
    s_add_u32 s68, s67, 4096""")
    stamp(5)
    for j in range(4): A(f"v_mov_b32 v{G+16+j}, 0")
    def ld4():
        for u in range(4): A(f"buffer_load_dwordx4 v[{G+4*u}:{G+4*u+3}], v61, s[12:15], s67 offen offset:{1024*u} sc1")
        A(f"s_mov_b32 exec_hi, 0\nbuffer_load_dwordx4 v[{G+16}:{G+19}], v61, s[12:15], s68 offen sc1\ns_mov_b32 exec_hi, -1")
    poll(ld4, range(G, G+20), 38)
    for j in range(4): A(f"v_add_f32 v{G+j}, v{G+j}, v{G+16+j}")
    for u in (2, 1):
        for j in range(4*u): A(f"v_add_f32 v{G+j}, v{G+j}, v{G+4*u+j}")
    quad_reduce(G)
    rbf(G); A(f"v_lshlrev_b32 v59, 16, v59\nv_add_f32 v{G}, v{G}, v59"); rbf(G)
    A(f"v_add_f32 v{G}, v{G}, v60\nv_cvt_pk_bf16_f32 v{G}, v{G}, v{G}")
    srd(20, 56, 2304)
    A(f"s_mov_b64 exec, 0xff\nbuffer_store_short v{G}, v57, s[20:23], 0 offen\ns_mov_b64 exec, -1")
    stamp(6)
    endp()
    A(f"""L_w6:
    s_cmp_ge_u32 s2, 144
    s_cbranch_scc1 L_end
    v_lshrrev_b32 v48, 5, v1
    v_and_b32 v49, 31, v1
    v_mul_u32_u24 v50, 1152, v48
    v_lshl_add_u32 v51, v49, 3, v50
    v_lshl_add_u32 v50, v49, 2, v50
    v_lshlrev_b32 v54, 1, v51
    v_lshlrev_b32 v55, 1, v50
    s_mov_b32 s67, {H3}""")
    if seq: A("s_barrier")
    def ld3():
        for u in range(4): A(f"buffer_load_dwordx4 v[{G+4*u}:{G+4*u+3}], v54, s[12:15], s67 offen offset:{512*u} sc1")
        A(f"buffer_load_dwordx2 v[{G+16}:{G+17}], v55, s[12:15], s67 offen offset:2048 sc1")
    poll(ld3, range(G, G+18), 38)
    lnstats(list(range(G, G+18)), 40)
    for i in range(9): A(f"v_cvt_pk_bf16_f32 v{G+i}, v{G+2*i}, v{G+2*i+1}")
    for u in range(4): A(f"ds_write_b64 v51, v[{G+2*u}:{G+2*u+1}] offset:{L_XN+256*u}")
    A(f"ds_write_b32 v50, v{G+8} offset:{L_XN+1024}\ns_waitcnt lgkmcnt(0)\ns_barrier")
    stamp(4)
    A("L_end:")
    if stamps:
        A(f"""s_cmp_eq_u32 s93, 0
        s_cbranch_scc1 L_exit
        v_lshlrev_b32 v62, 2, v1
        s_lshl_b32 s92, s2, 6
        s_add_u32 s92, s92, {STAMP}
        s_mov_b32 exec_lo, s93
        s_mov_b32 exec_hi, 0
        buffer_store_dword v63, v62, s[12:15], s92 offen""")
    A("L_exit:\ns_endpgm")
    A(f'''.section .rodata,"a"
    .p2align 6
    .amdhsa_kernel {NAME}_kernel
    .amdhsa_next_free_vgpr 256
    .amdhsa_next_free_sgpr 102
    .amdhsa_accum_offset 256
    .amdhsa_group_segment_fixed_size 0
    .amdhsa_kernarg_size 104
    .amdhsa_user_sgpr_count 2
    .amdhsa_user_sgpr_kernarg_segment_ptr 1
    .amdhsa_system_sgpr_workgroup_id_x 1
    .end_amdhsa_kernel''')
    if warm: L = add_pads(L, "L_tail:", "L_end:", warm)
    if stpol: L = [(x.replace(" sc1", ["", " sc0 sc1", " sc1 nt", " sc0 sc1 nt"][stpol]) if x.startswith("buffer_store") else x) for x in L]
    return "\n".join(L) + "\n"

if __name__ == "__main__":
    out = sys.argv[1]; kw = {}
    for a in sys.argv[2:]:
        k, v = a.split("="); kw[k] = int(v)
    ref = open("cdna_kernels/" + NAME + ".s.ref").read().split("\n") if not kw.get("stamps") else []
    hdr = "\n".join(l for l in ref if l.startswith(";") and "@launch" not in l)
    open(out, "w").write(gen(header=hdr, **kw))
```

```python
import sys, struct
NAME = "sequential_preLN__gqa_block_cached__dense_activation_gelu__decode"
QBOX, NONCE, H3, H1, H2, H4, STAMP = 0x0, 0x40000, 0x48000, 0x80000, 0x100000, 0x600000, 0x10000000
L_XN, L_Q, L_CNT, L_ACC, L_ML, L_W1 = 0x0, 0xA00, 0xC00, 0x1000, 0x3000, 0x4000
def f2u(x): return "0x%08x" % struct.unpack("<I", struct.pack("<f", x))[0]
SPIN = 1 << 18
CNTB = 0x50000

def add_pads(L, start, end, spacing):
    import subprocess, re, os
    open("_p.s", "w").write("\n".join(x for x in L if "L_pad0" not in x) + "\n")
    subprocess.run(["clang", "-x", "assembler", "-target", "amdgcn-amd-amdhsa", "-mcpu=gfx950", "-c", "_p.s", "-o", "_p.o"], check=True)
    d = subprocess.run(["llvm-objdump", "-d", "_p.o"], capture_output=True, text=True).stdout
    sizes = [4*len(m.group(1).split()) for m in re.finditer(r"// [0-9A-F]+: ((?:[0-9A-F]{8} ?)+)", d)]
    isins = lambda x: x and not x.startswith((";", ".")) and not x.endswith(":")
    out = []; k = 0; inreg = False; dist = 0; n = 0
    for x in L:
        if x == start:
            inreg = True; out.append(x); out.append("PAD"); dist = 4; continue
        if x == end and inreg:
            inreg = False; out.append("PAD")
        if isins(x) and "L_pad0" not in x:
            sz = sizes[k]; k += 1
            if inreg:
                if dist + sz > spacing: out.append("PAD"); dist = 4
                dist += sz
        out.append(x)
    tot = out.count("PAD"); res = []
    for x in out:
        if x == "PAD":
            res.append(f"L_pad{n}:"); n += 1
            res.append(f"s_cbranch_execz L_pad{n}" if n < tot else "s_cbranch_execz L_warmret")
        else: res.append(x)
    sys.stderr.write(f"pads {tot}\n")
    return res

def gen(NBUF=6, stamps=False, wlate=0, pace=-1, seq=0, slp=0, qslp=0, noclr=0, stpol=0, nopf=0, warm=0, nowt=0, exact=0, clr0=0, pair=0, ldpol=0, dyn=0, header=""):
    L = []
    def A(s): L.extend(x.strip() for x in s.strip().split("\n"))
    nlab = [0]
    def lab(p):
        nlab[0] += 1; return f"L_{p}{nlab[0]}"
    def srd(d, base, size):
        A(f"s_mov_b32 s{d}, s{base}\ns_and_b32 s{d+1}, s{base+1}, 0xffff\ns_mov_b32 s{d+2}, {size}\ns_mov_b32 s{d+3}, 0x20000")
    def stamp(i):
        if not stamps: return
        A(f"""s_memrealtime s[90:91]
        s_waitcnt lgkmcnt(0)
        v_writelane_b32 v63, s90, {i}
        s_bitset1_b32 s93, {i}""")
    def endp():
        if stamps: A("s_branch L_end")
        else: A("s_endpgm")
    def stamp0(i):
        if not stamps: return
        l = lab("st"); A(f"s_cmp_lg_u32 s3, 0\ns_cbranch_scc1 {l}"); stamp(i); A(f"{l}:")
    def dpp(op, d, a, b, ctl): A(f"{op}_dpp v{d}, v{a}, v{b} {ctl} row_mask:0xf bank_mask:0xf")
    def swapred(op, regs, tmp, which):
        for i, r in enumerate(regs): A(f"v_mov_b32 v{tmp+i}, v{r}")
        A("s_nop 1")
        for i, r in enumerate(regs): A(f"v_permlane{which}_swap_b32 v{r}, v{tmp+i}")
        for i, r in enumerate(regs): A(f"{op} v{r}, v{r}, v{tmp+i}")
    def dppred(op, regs, ctls):
        for c in ctls:
            if len(regs) < 3: A("s_nop 1")
            for r in regs: dpp(op, r, r, r, c)
    def anysent(regs, t):
        regs = list(regs)
        A(f"v_xor_b32 v{t}, s80, v{regs[0]}")
        for r in regs[1:]: A(f"v_xor_b32 v{t+1}, s80, v{r}\nv_or_b32 v{t}, v{t}, v{t+1}")
        A(f"v_cmp_ne_u32 vcc, 0, v{t}")
    def poll(loads, regs, t):
        l0, l1 = lab("poll"), lab("done")
        A(f"s_mov_b32 s70, {SPIN}\n{l0}:")
        loads()
        A("s_waitcnt vmcnt(0)")
        anysent(regs, t)
        A(f"s_cbranch_vccz {l1}")
        if slp: A(f"s_sleep {slp}")
        A(f"s_sub_u32 s70, s70, 1\ns_cbranch_scc0 {l0}\n{l1}:")
    def pack24(d):
        A("s_mov_b32 s68, 0x07060501\ns_mov_b32 s69, 0x07060502\ns_mov_b32 s79, 0x07060503")
        for r, sg in enumerate((68, 69, 79)): A(f"v_perm_b32 v{d+r}, v{d+r}, v{d+3}, s{sg}")
    def unpack24(d):
        A(f"v_perm_b32 v{d+3}, v{d+1}, v{d}, s68\nv_perm_b32 v{d+3}, v{d+2}, v{d+3}, s69")
    SELU = "s_mov_b32 s68, 0x0c0c0400\ns_mov_b32 s69, 0x0401000c"
    def bmask(dst, src):
        for r in range(4): A(f"v_and_b32 v{dst+r}, v{6+r}, v{src}")
    def MF(d, a, b, c=None):
        cs = f"v[{d}:{d+3}]" if c is None else c
        A(f"v_mfma_f32_16x16x32_bf16 v[{d}:{d+3}], v[{a}:{a+3}], v[{b}:{b+3}], {cs}")
    def lnstats(vals, t):
        A(f"v_add_f32 v{t}, v{vals[0]}, v{vals[1]}")
        for v in vals[2:]: A(f"v_add_f32 v{t}, v{t}, v{v}")
        dppred("v_add_f32", [t], ["row_ror:8", "row_ror:4", "row_ror:2", "row_ror:1"])
        swapred("v_add_f32", [t], t+1, 16)
        A(f"v_mul_f32 v{t}, {f2u(1/576)}, v{t}")
        for v in vals: A(f"v_sub_f32 v{v}, v{v}, v{t}")
        A(f"v_mul_f32 v{t}, v{vals[0]}, v{vals[0]}")
        for v in vals[1:]: A(f"v_fmac_f32 v{t}, v{v}, v{v}")
        dppred("v_add_f32", [t], ["row_ror:8", "row_ror:4", "row_ror:2", "row_ror:1"])
        swapred("v_add_f32", [t], t+1, 16)
        A(f"v_mov_b32 v{t+1}, {f2u(1e-5)}\nv_fmac_f32 v{t+1}, {f2u(1/576)}, v{t}\nv_rsq_f32 v{t}, v{t+1}\ns_nop 0")
        for v in vals: A(f"v_mul_f32 v{v}, v{v}, v{t}")
    SL = 64
    NT = 256
    def tile_loads(k, sreg):
        b = SL + 32*k
        for t in range(4): A(f"buffer_load_dwordx4 v[{b+4*t}:{b+4*t+3}], v4, s[4:7], s{sreg} offen offset:{64*t} nt")
        for t in range(4): A(f"buffer_load_dwordx4 v[{b+16+4*t}:{b+16+4*t+3}], v5, s[8:11], s{sreg} offen offset:{256*t} nt")
    def prefetch(paced=False):
        A("s_lshl_b32 s67, s3, 12\ns_add_u32 s67, s67, s66")
        if dyn: A("s_lshl_b32 s68, s64, 15\ns_add_u32 s67, s67, s68")
        for k in range(NBUF):
            tile_loads(k, 67)
            if k + 1 < NBUF:
                A("s_add_u32 s67, s67, %d" % (0x40000 if dyn else 0x8000))
                if paced and pace >= 0: A(f"s_waitcnt vmcnt({pace})")
    WO, W1, W2, B1 = 64, 80, 104, 136
    def load_wo():
        l = lab("wo"); A(f"s_cmp_gt_u32 s3, 4\ns_cbranch_scc1 {l}")
        srd(20, 44, 4096*1152)
        A(f"""s_lshl_b32 s67, s62, 8
        s_lshl_b32 s68, s63, 7
        s_add_u32 s67, s67, s68
        s_add_u32 s67, s67, s64
        s_mul_i32 s67, s67, 1152
        s_lshl_b32 s68, s3, 8
        s_add_u32 s67, s67, s68
        v_mul_u32_u24 v48, {32*1152}, v3
        v_lshl_add_u32 v48, v2, 4, v48""")
        for t in range(4):
            A(f"buffer_load_dwordx4 v[{WO+4*t}:{WO+4*t+3}], v48, s[20:23], s67 offen nt")
            if t < 3: A("s_add_u32 s67, s67, 9216")
        A(f"{l}:")
    def load_mlp():
        l = lab("mlp"); l2 = lab("mlp")
        A(f"s_cmp_ge_u32 s2, 144\ns_cbranch_scc1 {l}\ns_cmp_gt_u32 s3, 5\ns_cbranch_scc1 {l}")
        srd(24, 48, 576*9216)
        A(f"""s_mul_i32 s67, s3, {96*9216}
        s_lshl_b32 s68, s89, 6
        s_add_u32 s67, s67, s68
        v_mul_u32_u24 v49, {8*9216}, v3
        v_lshl_add_u32 v49, v2, 2, v49""")
        for i in range(24):
            A(f"buffer_load_dword v{W1+i}, v49, s[24:27], s67 offen {'' if pair == 1 else 'nt'}")
            if i < 23: A(f"s_add_u32 s67, s67, {9216 if i % 8 != 7 else 25*9216}")
        A(f"s_cmp_gt_u32 s3, 4\ns_cbranch_scc1 {l}")
        srd(28, 52, 4608*1152)
        A(f"""s_mul_i32 s67, s89, {32*1152}
        s_lshl_b32 s68, s3, 8
        s_add_u32 s67, s67, s68
        v_mul_u32_u24 v50, {8*1152}, v3
        v_lshl_add_u32 v50, v2, 4, v50""")
        for t in range(8):
            A(f"buffer_load_dwordx4 v[{W2+4*t}:{W2+4*t+3}], v50, s[28:31], s67 offen offset:{1152*(t%4)} nt")
            if t == 3: A("s_add_u32 s67, s67, 4608")
        srd(24, 50, 4608*2)
        A(f"""v_and_b32 v51, 7, v2
        v_lshl_add_u32 v51, v3, 3, v51
        v_lshlrev_b32 v51, 1, v51
        s_lshl_b32 s67, s89, 6
        buffer_load_ushort v{B1}, v51, s[24:27], s67 offen""")
        A(f"{l}:")
    def quad_store(d, box):
        A(f"""s_lshl_b32 s67, s3, 18
        s_lshl_b32 s68, s2, 5
        s_add_u32 s67, s67, s68
        s_add_u32 s67, s67, {box}
        s_nop 0""")
        pack24(d)
        A(f"""v_mov_b32 v{d+3}, s80
        s_cmp_eq_u32 s3, 4
        s_cselect_b32 exec_hi, 0, -1
        buffer_store_dwordx4 v[{d}:{d+3}], v52, s[12:15], s67 offen sc1
        s_mov_b32 exec_hi, -1""")
    def quad_reduce(d):
        dppred("v_add_f32", [d, d+1, d+2, d+3], ["quad_perm:[2,3,0,1]", "row_ror:4", "row_ror:8"])
        swapred("v_add_f32", [d, d+1, d+2, d+3], 44, 16)
        swapred("v_add_f32", [d, d+1, d+2, d+3], 44, 32)
    def rbf(r, t=None):
        A(f"v_cvt_pk_bf16_f32 v{r}, v{r}, v{r}\nv_and_b32 v{r}, 0xffff0000, v{r}")

    A(header)
    A("; @launch grid=(256,1,1) block=(512,1,1) lds=90000")
    A('.amdgcn_target "amdgcn-amd-amdhsa--gfx950"\n.text')
    A(f".globl {NAME}_kernel\n.p2align 8\n.type {NAME}_kernel,@function\n{NAME}_kernel:")
    A(f"""s_cmp_ge_u32 s2, 256
    s_cbranch_scc1 L_exit
    s_mov_b32 s93, 0
    s_load_dwordx16 s[36:51], s[0:1], 0
    s_load_dwordx8 s[52:59], s[0:1], 64
    s_load_dwordx2 s[60:61], s[0:1], 96
    v_lshrrev_b32 v48, 6, v0
    v_and_b32 v1, 63, v0
    v_readfirstlane_b32 s3, v48
    v_and_b32 v2, 15, v1
    v_lshrrev_b32 v3, 4, v1
    v_lshlrev_b32 v4, 8, v2
    v_lshl_add_u32 v4, v3, 4, v4
    v_lshlrev_b32 v5, 4, v2
    v_lshl_add_u32 v5, v3, 10, v5
    v_mov_b32 v57, 0
    v_lshlrev_b32 v61, 4, v1
    s_lshr_b32 s62, s2, 3
    s_and_b32 s62, s62, 15
    s_lshr_b32 s63, s2, 7
    s_and_b32 s64, s2, 7
    s_lshl_b32 s65, s63, 3
    s_add_u32 s65, s65, s64
    s_lshl_b32 s66, s2, 20
    s_andn2_b32 s89, s2, 15
    s_lshl_b32 s67, s64, 1
    s_add_u32 s89, s89, s67
    s_bfe_u32 s67, s2, 0x10003
    s_add_u32 s89, s89, s67
    {"" if pair else "s_mov_b32 s89, s2"}
    s_mov_b32 s76, {f2u(1.4426950408889634 * 128**-0.5)}
    s_mov_b32 s77, {f2u(-1.4426950408889634 * 128**-0.5)}
    s_waitcnt lgkmcnt(0)
    s_load_dword s80, s[60:61], {NONCE}""")
    if dyn: A(f"""s_lshr_b32 s94, s2, 3
    s_lshl_b32 s66, s94, 23
    s_mul_i32 s94, s94, {dyn}
    s_add_u32 s94, s94, {CNTB}
    s_load_dword s95, s[60:61], s94""")
    srd(4, 38, 0x10000000); srd(8, 40, 0x10000000); srd(12, 60, 0x40000000)
    A("s_cmp_eq_u32 s3, 0\ns_cbranch_scc1 L_qphase")
    if nopf: A("s_waitcnt lgkmcnt(0)\ns_barrier")
    prefetch(True)
    A("L_masks:\ns_waitcnt lgkmcnt(0)\ns_add_u32 s80, s80, 0x9e3779b9")
    A("""v_and_b32 v48, 1, v2
    v_lshlrev_b32 v48, 4, v48
    v_mov_b32 v49, 0xffff
    v_lshlrev_b32 v49, v48, v49
    v_bfe_u32 v48, v2, 1, 2""")
    for r in range(4): A(f"v_cmp_eq_u32 vcc, {r}, v48\ns_nop 1\nv_cndmask_b32 v{6+r}, 0, v49, vcc")
    A("s_cmp_eq_u32 s3, 0\ns_cbranch_scc1 L_qphase2\ns_barrier\ns_branch L_main")
    A("L_qphase:")
    stamp(0)
    srd(20, 36, 2304); srd(24, 42, 576*8192)
    XQ = 200
    A(f"""v_lshrrev_b32 v48, 5, v1
    v_and_b32 v49, 31, v1
    v_mul_u32_u24 v50, 1152, v48
    v_lshl_add_u32 v51, v49, 4, v50
    v_lshl_add_u32 v50, v49, 2, v50
    buffer_load_dwordx4 v[{XQ}:{XQ+3}], v51, s[20:23], 0 offen
    buffer_load_dwordx4 v[{XQ+4}:{XQ+7}], v51, s[20:23], 0 offen offset:512
    buffer_load_dword v{XQ+8}, v50, s[20:23], 0 offen offset:1024
    s_lshl_b32 s67, s62, 1
    s_add_u32 s67, s67, s63
    s_lshl_b32 s67, s67, 8
    s_mul_i32 s68, s64, {72*8192}
    s_add_u32 s67, s67, s68
    v_mul_u32_u24 v52, {18*8192}, v3
    v_lshl_add_u32 v52, v2, 4, v52""")
    for t in range(18):
        A(f"buffer_load_dwordx4 v[{SL+4*t}:{SL+4*t+3}], v52, s[24:27], s67 offen nt")
        if t < 17: A("s_add_u32 s67, s67, 8192")
    if nopf == 2: A("s_barrier")
    stamp(11)
    A("""s_waitcnt vmcnt(18)
    s_branch L_masks
    L_qphase2:""")
    XF = 210
    for i in range(9): A(f"v_lshlrev_b32 v{XF+2*i}, 16, v{XQ+i}\nv_and_b32 v{XF+2*i+1}, 0xffff0000, v{XQ+i}")
    lnstats(list(range(XF, XF+18)), 40)
    for i in range(9): A(f"v_cvt_pk_bf16_f32 v{XQ+i}, v{XF+2*i}, v{XF+2*i+1}")
    A(f"""ds_write_b128 v51, v[{XQ}:{XQ+3}] offset:{L_XN}
    ds_write_b128 v51, v[{XQ+4}:{XQ+7}] offset:{L_XN+512}
    ds_write_b32 v50, v{XQ+8} offset:{L_XN+1024}
    v_lshrrev_b32 v48, 3, v2
    v_mul_u32_u24 v48, 1152, v48
    v_mul_u32_u24 v49, 36, v3
    s_mul_i32 s67, s64, 144
    v_add3_u32 v48, v48, v49, s67
    v_mov_b32 v49, {8*NBUF}
    v_mov_b32 v54, 0
    ds_write_b32 v54, v49 offset:{L_CNT}
    s_waitcnt lgkmcnt(0)""")
    stamp(13)
    for i in range(9): A(f"ds_read_b32 v{XQ+i}, v48 offset:{L_XN+4*i}")
    A("s_mov_b32 s68, 0x01000100\ns_mov_b32 s69, 0x03020302\ns_waitcnt vmcnt(0) lgkmcnt(0)")
    stamp(8)
    if nopf == 1: A("s_barrier")
    for t in range(18):
        bs = 40 + 4*(t % 2)
        A(f"v_perm_b32 v55, v{XQ+t//2}, v{XQ+t//2}, s{68+t%2}")
        bmask(bs, 55)
        if t > 0: MF(26, SL+4*(t-1), 40+4*((t-1) % 2), "0" if t == 1 else None)
    A("s_nop 1"); MF(26, SL+68, 44)
    A(f"""v_lshrrev_b32 v48, 3, v2
    v_lshlrev_b32 v48, 13, v48
    v_and_b32 v49, 7, v2
    v_lshl_add_u32 v49, v3, 3, v49
    v_lshl_add_u32 v48, v49, 4, v48
    s_lshl_b32 s67, s62, 14
    s_lshl_b32 s68, s63, 12
    s_add_u32 s67, s67, s68
    s_lshl_b32 s68, s64, 9
    s_add_u32 s67, s67, s68
    s_nop 0""")
    pack24(26)
    A("v_mov_b32 v29, s80\nbuffer_store_dwordx4 v[26:29], v48, s[12:15], s67 offen sc1")
    stamp(9)
    A(f"""
    v_lshrrev_b32 v48, 5, v1
    v_and_b32 v49, 31, v1
    v_lshlrev_b32 v50, 12, v48
    v_lshl_add_u32 v50, v49, 4, v50
    s_lshl_b32 s67, s62, 14
    s_lshl_b32 s68, s63, 13
    s_add_u32 s67, s67, s68""")
    A(f"""v_lshrrev_b32 v51, 3, v49
    v_lshlrev_b32 v51, 6, v51
    v_and_b32 v49, 7, v49
    v_lshl_add_u32 v51, v49, 1, v51
    v_lshl_add_u32 v51, v48, 8, v51
    {SELU}
    s_mov_b32 s70, {SPIN}
    L_qpoll:""")
    for u in range(8): A(f"buffer_load_dwordx4 v[{SL+4*u}:{SL+4*u+3}], v50, s[12:15], s67 offen offset:{512*u} sc1")
    A(f"s_waitcnt vmcnt(0)\nv_xor_b32 v38, s80, v{SL+3}")
    for u in range(1, 8): A(f"v_xor_b32 v39, s80, v{SL+4*u+3}\nv_or_b32 v38, v38, v39")
    A("v_cmp_ne_u32 vcc, 0, v38\ns_cbranch_vccz L_qgot\ns_sub_u32 s70, s70, 1\ns_cbranch_scc0 L_qpoll\nL_qgot:")
    stamp(10)
    for u in range(8): unpack24(SL+4*u)
    for u in range(1, 8):
        for r in range(4): A(f"v_add_f32 v{SL+r}, v{SL+r}, v{SL+4*u+r}")
    for r in range(4): A(f"v_cvt_pk_bf16_f32 v{SL+r}, v{SL+r}, v{SL+r}")
    for r in range(4): A(f"ds_write_b16 v51, v{SL+r} offset:{L_Q+16*r}")
    A("s_waitcnt lgkmcnt(0)\ns_barrier")
    stamp(1)
    prefetch()
    A(f"""L_main:
    v_lshrrev_b32 v48, 3, v2
    v_lshlrev_b32 v48, 8, v48
    v_lshl_add_u32 v48, v3, 4, v48""")
    for t in range(4): A(f"ds_read_b128 v[{10+4*t}:{13+4*t}], v48 offset:{L_Q+64*t}")
    A(f"""v_mov_b32 v26, 0
    v_mov_b32 v27, 0
    v_mov_b32 v28, 0
    v_mov_b32 v29, 0
    v_mov_b32 v30, 0xff800000
    v_mov_b32 v31, 0
    v_mov_b32 v52, {L_CNT}
    v_mov_b32 v55, 1
    s_mov_b32 s71, {NBUF}
    s_waitcnt lgkmcnt(0)""")
    if warm: A("s_cmp_lg_u32 s3, 7\ns_cbranch_scc1 L_loop\ns_mov_b64 exec, 0\ns_branch L_pad0\nL_warmret:\ns_mov_b64 exec, -1")
    if dyn: A(f"""s_sub_u32 s95, s95, {64*(NBUF+1)}
    s_lshl_b32 s67, s64, 3
    s_add_u32 s67, s67, s3
    s_add_u32 s67, s67, {64*NBUF}
    s_add_u32 s67, s67, s95
    v_mov_b32 v54, s67
    v_mov_b32 v52, 0
    s_waitcnt vmcnt({8*(NBUF-1)})""")
    A("L_loop:")
    for k in range(NBUF):
        b = SL + 32*k
        A(f"s_waitcnt vmcnt({(9 if dyn else 8)*(NBUF-1)})")
        for t in range(4): MF(32, b+4*t, 10+4*t, "0" if t == 0 else None)
        A("s_nop 7" if dyn else "s_mov_b64 exec, 1\nds_add_rtn_u32 v54, v52, v55\ns_mov_b64 exec, -1\ns_nop 4")
        A("""v_max3_f32 v36, v32, v33, v34
        v_max_f32 v36, v36, v35""")
        swapred("v_max_f32", [36], 37, 16)
        swapred("v_max_f32", [36], 37, 32)
        A("""v_max_f32 v36, v36, v30
        v_mul_f32 v37, s77, v36
        v_fma_f32 v38, v30, s76, v37
        v_fma_f32 v32, v32, s76, v37
        v_exp_f32 v38, v38
        v_exp_f32 v32, v32
        v_fma_f32 v33, v33, s76, v37
        v_fma_f32 v34, v34, s76, v37
        v_fma_f32 v35, v35, s76, v37
        v_mov_b32 v30, v36
        v_cvt_pk_bf16_f32 v39, v32, v32
        v_exp_f32 v33, v33
        v_exp_f32 v34, v34
        v_exp_f32 v35, v35
        v_mul_f32 v26, v26, v38
        v_mul_f32 v27, v27, v38
        v_mul_f32 v28, v28, v38
        v_mul_f32 v29, v29, v38
        v_fma_f32 v31, v31, v38, v32""")
        bmask(40, 39)
        for r in range(1, 4):
            A(f"v_cvt_pk_bf16_f32 v39, v{32+r}, v{32+r}\nv_add_f32 v31, v31, v{32+r}")
            MF(26, b+16+4*(r-1), 40+4*((r-1) % 2))
            bmask(40+4*(r % 2), 39)
        A("s_waitcnt %s\nv_readfirstlane_b32 s67, v54" % ("vmcnt(8)" if dyn else "lgkmcnt(0)"))
        MF(26, b+28, 44)
        ls, ln = lab("skip"), lab("next")
        if dyn:
            assert NBUF == 2
            A(f"""s_sub_u32 s67, s67, s95
            s_cmp_ge_u32 s67, 2048
            s_cbranch_scc1 {ls}
            v_mov_b32 v54, 1
            s_lshl_b32 s67, s67, 12
            s_add_u32 s67, s67, s66
            s_mov_b64 exec, 1
            buffer_atomic_add v54, v52, s[12:15], s94 offen sc0 sc1
            s_mov_b64 exec, -1""")
        else: A(f"s_cmp_ge_u32 s67, {NT}\ns_cbranch_scc1 {ls}\ns_lshl_b32 s67, s67, 12\ns_add_u32 s67, s67, s66")
        tile_loads(k, 67)
        A(f"s_branch {ln}" if k + 1 < NBUF else "s_branch L_loop")
        A(f"{ls}:\ns_sub_u32 s71, s71, 1\ns_cmp_eq_u32 s71, 0\ns_cbranch_scc1 L_tail")
        if not exact: A("buffer_load_dword v56, v53, s[16:19], 0 offen sc1\ns_waitcnt vmcnt(0)")
        else:
            tgt = ln if k + 1 < NBUF else "L_loop"
            for j in range(NBUF-1, 0, -1):
                lj = lab("dr")
                if j > 1: A(f"s_cmp_lg_u32 s71, {j}\ns_cbranch_scc1 {lj}")
                A(f"s_waitcnt vmcnt({8*(j-1)})")
                if j > 1: A(f"s_branch {tgt}\n{lj}:")
        A(f"{ln}:" if k + 1 < NBUF else "s_branch L_loop")
    A("L_tail:")
    if not nowt: load_wo()
    if wlate == 0 and not nowt: load_mlp()
    swapred("v_add_f32", [31], 37, 16)
    swapred("v_add_f32", [31], 37, 32)
    A(f"""v_mul_f32 v30, s76, v30
    s_lshl_b32 s67, s3, 9
    v_lshl_add_u32 v54, v1, 3, s67
    v_lshlrev_b32 v55, 1, v54
    ds_write_b64 v54, v[30:31] offset:{L_ML}
    ds_write_b128 v55, v[26:29] offset:{L_ACC}
    v_lshrrev_b32 v52, 1, v1
    v_lshlrev_b32 v52, 13, v52
    v_and_b32 v53, 1, v1
    v_lshl_add_u32 v52, v53, 4, v52
    s_waitcnt lgkmcnt(0)
    s_barrier
    s_cmp_eq_u32 s3, 5
    s_cbranch_scc1 L_w5
    s_cmp_eq_u32 s3, 6
    s_cbranch_scc1 L_w6
    s_cmp_eq_u32 s3, 7
    s_cbranch_scc1 L_end
    s_cmp_lg_u32 s3, 0
    s_cbranch_scc1 L_h1""")
    stamp(2)
    CA, CM = 160, 192
    for w in range(8): A(f"ds_read_b64 v[{CM+2*w}:{CM+2*w+1}], v54 offset:{L_ML+512*w}")
    for w in range(8): A(f"ds_read_b128 v[{CA+4*w}:{CA+4*w+3}], v55 offset:{L_ACC+1024*w}")
    A(f"s_waitcnt lgkmcnt(8)\nv_max3_f32 v30, v{CM}, v{CM+2}, v{CM+4}\nv_max3_f32 v30, v30, v{CM+6}, v{CM+8}\nv_max3_f32 v30, v30, v{CM+10}, v{CM+12}\nv_max_f32 v30, v30, v{CM+14}")
    for w in range(8): A(f"v_sub_f32 v{CM+2*w}, v{CM+2*w}, v30")
    for w in range(8): A(f"v_exp_f32 v{CM+2*w}, v{CM+2*w}")
    A(f"s_waitcnt lgkmcnt(0)\nv_mul_f32 v31, v{CM}, v{CM+1}")
    for r in range(4): A(f"v_mul_f32 v{26+r}, v{CM}, v{CA+r}")
    for w in range(1, 8):
        A(f"v_fmac_f32 v31, v{CM+2*w}, v{CM+2*w+1}")
        for r in range(4): A(f"v_fmac_f32 v{26+r}, v{CM+2*w}, v{CA+4*w+r}")
    A(f"""v_rcp_f32 v32, v31
    v_log_f32 v31, v31
    v_lshlrev_b32 v54, 10, v2
    v_lshl_add_u32 v54, v3, 4, v54
    s_lshl_b32 s67, s62, 14
    s_lshl_b32 s68, s65, 6
    s_add_u32 s67, s67, s68
    s_add_u32 s67, s67, {H1}""")
    for r in range(4): A(f"v_mul_f32 v{26+r}, v{26+r}, v32")
    A(f"""v_cvt_pk_bf16_f32 v26, v26, v27
    v_cvt_pk_bf16_f32 v27, v28, v29
    v_add_f32 v28, v30, v31
    v_mov_b32 v29, s80
    buffer_store_dwordx4 v[26:29], v54, s[12:15], s67 offen sc1
    L_h1:
    v_lshlrev_b32 v54, 6, v2
    v_lshl_add_u32 v54, v3, 4, v54
    s_lshl_b32 s67, s62, 4
    s_add_u32 s67, s67, s65
    s_lshl_b32 s67, s67, 10
    s_add_u32 s67, s67, {H1}""")
    poll(lambda: A("buffer_load_dwordx4 v[32:35], v54, s[12:15], s67 offen sc1"), [35], 38)
    A("""v_mov_b32 v38, v34
    v_mov_b32 v37, v34
    v_and_b32 v35, 0xffff0000, v33
    v_lshlrev_b32 v34, 16, v33
    v_and_b32 v33, 0xffff0000, v32
    v_lshlrev_b32 v32, 16, v32""")
    c8 = ["quad_perm:[1,0,3,2]", "quad_perm:[2,3,0,1]", "row_half_mirror"]
    dppred("v_max_f32", [38], c8)
    A("v_sub_f32 v37, v37, v38\nv_exp_f32 v37, v37\ns_nop 0")
    for r in range(4): A(f"v_mul_f32 v{32+r}, v{32+r}, v37")
    dppred("v_add_f32", [37, 32, 33, 34, 35], c8)
    A("v_rcp_f32 v37, v37\ns_nop 0")
    for r in range(4): A(f"v_mul_f32 v{32+r}, v{32+r}, v37")
    for t in range(4):
        A(f"v_cvt_pk_bf16_f32 v39, v{32+t}, v{32+t}")
        bmask(40+4*(t % 2), 39)
        if t > 0: MF(26, WO+4*(t-1), 40+4*((t-1) % 2), "0" if t == 1 else None)
    A("s_nop 1"); MF(26, WO+12, 44)
    A("s_nop 1")
    quad_store(26, H2)
    stamp0(7)
    A("s_cmp_ge_u32 s2, 144\ns_cbranch_scc1 L_end")
    if seq: A("s_barrier")
    if wlate == 1: load_mlp()
    A("L_mlp:\ns_mov_b32 s68, 0x05040100\ns_mov_b32 s69, 0x07060302\ns_waitcnt vmcnt(0)")
    FE = 160
    for i in range(3):
        for a in range(4):
            A(f"v_perm_b32 v{FE+8*i+a}, v{W1+8*i+2*a+1}, v{W1+8*i+2*a}, s68\nv_perm_b32 v{FE+8*i+4+a}, v{W1+8*i+2*a+1}, v{W1+8*i+2*a}, s69")
    A(f"""v_lshrrev_b32 v48, 3, v2
    v_mul_u32_u24 v48, 1152, v48
    v_lshl_add_u32 v48, v3, 4, v48
    s_mul_i32 s67, s3, 192
    v_add_u32 v48, s67, v48
    s_lshl_b32 s67, s3, 11
    v_lshl_add_u32 v49, v1, 4, s67
    v_and_b32 v50, 1, v2
    v_lshlrev_b32 v50, 10, v50
    v_lshl_add_u32 v50, v1, 4, v50
    v_bfe_u32 v51, v2, 1, 2
    v_lshl_add_u32 v50, v51, 2, v50
    s_barrier""")
    for i in range(3): A(f"ds_read_b128 v[{184+4*i}:{187+4*i}], v48 offset:{L_XN+64*i}")
    for i in range(3):
        A(f"s_waitcnt lgkmcnt({2-i})")
        MF(32, FE+8*i, 184+4*i, "0" if i == 0 else None)
        MF(36, FE+8*i+4, 184+4*i, "0" if i == 0 else None)
    A(f"""s_nop 6
    ds_write_b128 v49, v[32:35] offset:{L_W1}
    ds_write_b128 v49, v[36:39] offset:{L_W1+1024}
    s_waitcnt lgkmcnt(0)
    s_barrier
    s_cmp_eq_u32 s3, 5
    s_cbranch_scc1 L_w5b""")
    for w in range(6): A(f"ds_read_b32 v{32+w}, v50 offset:{L_W1+2048*w}")
    A(f"v_lshlrev_b32 v{B1}, 16, v{B1}\ns_waitcnt lgkmcnt(0)\nv_add_f32 v32, v32, v33\nv_add_f32 v34, v34, v35\nv_add_f32 v36, v36, v37\nv_add_f32 v32, v32, v34\nv_add_f32 v32, v32, v36")
    rbf(32); A(f"v_add_f32 v32, v32, v{B1}"); rbf(32)
    k0 = -2*0.7978845608028654*1.4426950408889634
    A(f"""v_mul_f32 v33, v32, v32
    v_mov_b32 v34, {f2u(k0)}
    v_fmac_f32 v34, {f2u(k0*0.044715)}, v33
    v_mul_f32 v33, v34, v32
    v_exp_f32 v33, v33
    s_nop 0
    v_add_f32 v33, 1.0, v33
    v_rcp_f32 v33, v33
    s_nop 0
    v_mul_f32 v32, v32, v33
    v_cvt_pk_bf16_f32 v32, v32, v32
    s_nop 1""")
    for t in range(8):
        A(f"v_mov_b32_dpp v39, v32 row_newbcast:{t} row_mask:0xf bank_mask:0x3\nv_mov_b32_dpp v39, v32 row_newbcast:{8+t} row_mask:0xf bank_mask:0xc")
        bmask(40+4*(t % 2), 39)
        if t > 0: MF(26, W2+4*(t-1), 40+4*((t-1) % 2), "0" if t == 1 else None)
    A("s_nop 1"); MF(26, W2+28, 44)
    A("s_nop 1")
    quad_store(26, H4)
    endp()
    A(f"""L_w5:
    s_cmp_ge_u32 s2, 144
    s_cbranch_scc1 L_end
    s_lshl_b32 s67, s2, 1
    v_add_u32 v53, s67, v53
    v_lshrrev_b32 v54, 4, v53
    v_lshlrev_b32 v54, 5, v54
    v_and_b32 v55, 7, v53
    v_add_u32 v54, v54, v55
    v_bfe_u32 v56, v53, 3, 1
    v_mul_u32_u24 v56, 576, v56
    v_add_u32 v56, v56, v54
    v_lshlrev_b32 v54, 1, v54
    v_lshlrev_b32 v57, 1, v56""")
    srd(20, 36, 2304); srd(28, 54, 1152)
    for r in range(4): A(f"buffer_load_ushort v{240+r}, v57, s[20:23], 0 offen offset:{16*r}\nbuffer_load_ushort v{244+r}, v54, s[28:31], 0 offen offset:{16*r}")
    A(f"""{SELU}
    v_lshlrev_b32 v61, 4, v1
    s_lshl_b32 s78, s2, 13
    s_add_u32 s81, s78, {H2}""")
    for u in range(1, 8): A(f"s_add_u32 s{81+u}, s81, {1024*u}")
    G = 200
    if seq: A("s_barrier")
    def ld2():
        for u in range(8): A(f"buffer_load_dwordx4 v[{G+4*u}:{G+4*u+3}], v61, s[12:15], s{81+u} offen sc1")
    poll(ld2, range(G+3, G+32, 4), 38)
    for u in range(8): unpack24(G+4*u)
    for u in (4, 2, 1):
        for j in range(4*u): A(f"v_add_f32 v{G+j}, v{G+j}, v{G+4*u+j}")
    quad_reduce(G)
    A(f"v_cvt_pk_bf16_f32 v{G}, v{G}, v{G+1}\nv_cvt_pk_bf16_f32 v{G+2}, v{G+2}, v{G+3}")
    for r in range(4): A(f"v_lshlrev_b32 v{240+r}, 16, v{240+r}")
    def unp(srcs, d):
        for i, x in enumerate(srcs): A(f"v_and_b32 v{d+2*i+1}, 0xffff0000, v{x}\nv_lshlrev_b32 v{d+2*i}, 16, v{x}")
    unp([G, G+2], G+4)
    for r in range(4): A(f"v_add_f32 v{240+r}, v{240+r}, v{G+4+r}")
    A(f"""v_cvt_pk_bf16_f32 v248, v240, v241
    v_cvt_pk_bf16_f32 v249, v242, v243
    v_mov_b32 v250, s80
    v_mov_b32 v251, s80
    s_lshl_b32 s67, s2, 5
    s_add_u32 s67, s67, {H3}
    s_mov_b64 exec, 3
    buffer_store_dwordx4 v[248:251], v61, s[12:15], s67 offen sc1
    s_mov_b64 exec, -1""")
    stamp(3)
    if wlate == 1: load_mlp()
    A(f"""s_branch L_mlp
    L_w5b:
    s_add_u32 s81, s78, {H4}""")
    for u in range(1, 5): A(f"s_add_u32 s{81+u}, s81, {1024*u}")
    stamp(5)
    def zero16():
        for j in range(3): A(f"v_mov_b32 v{G+16+j}, 0")
        A(f"v_mov_b32 v{G+19}, s80")
    zero16(); A(SELU)
    def ld4():
        for u in range(4): A(f"buffer_load_dwordx4 v[{G+4*u}:{G+4*u+3}], v61, s[12:15], s{81+u} offen sc1")
        A(f"s_mov_b32 exec_hi, 0\nbuffer_load_dwordx4 v[{G+16}:{G+19}], v61, s[12:15], s85 offen sc1\ns_mov_b32 exec_hi, -1")
    poll(ld4, range(G+3, G+20, 4), 38)
    for u in range(5): unpack24(G+4*u)
    for j in range(4): A(f"v_add_f32 v{G+j}, v{G+j}, v{G+16+j}")
    for u in (2, 1):
        for j in range(4*u): A(f"v_add_f32 v{G+j}, v{G+j}, v{G+4*u+j}")
    quad_reduce(G)
    A(f"v_cvt_pk_bf16_f32 v{G}, v{G}, v{G+1}\nv_cvt_pk_bf16_f32 v{G+2}, v{G+2}, v{G+3}")
    for r in range(4): A(f"v_lshlrev_b32 v{244+r}, 16, v{244+r}")
    unp([G, G+2], G+4)
    for r in range(4): A(f"v_add_f32 v{244+r}, v{244+r}, v{G+4+r}")
    A(f"v_cvt_pk_bf16_f32 v{G}, v244, v245\nv_cvt_pk_bf16_f32 v{G+2}, v246, v247")
    unp([248, 249], 240); unp([G, G+2], G+4)
    for r in range(4): A(f"v_add_f32 v{240+r}, v{240+r}, v{G+4+r}")
    A(f"v_cvt_pk_bf16_f32 v{G}, v240, v241\nv_cvt_pk_bf16_f32 v{G+2}, v242, v243")
    srd(20, 56, 2304)
    A(f"""s_mov_b64 exec, 3
    buffer_store_short v{G}, v57, s[20:23], 0 offen
    buffer_store_short_d16_hi v{G}, v57, s[20:23], 0 offen offset:16
    buffer_store_short v{G+2}, v57, s[20:23], 0 offen offset:32
    buffer_store_short_d16_hi v{G+2}, v57, s[20:23], 0 offen offset:48
    s_mov_b64 exec, -1""")
    stamp(6)
    A(f"""s_cmp_lg_u32 s2, 0
    s_cbranch_scc1 L_end
    v_mov_b32 v48, s80
    s_mov_b32 s67, {NONCE}
    s_mov_b64 exec, 1
    buffer_store_dword v48, v61, s[12:15], s67 offen
    s_mov_b64 exec, -1""")
    endp()
    A(f"""L_w6:
    s_cmp_ge_u32 s2, 144
    s_cbranch_scc1 L_end
    v_bfe_u32 v50, v2, 3, 1
    v_mul_u32_u24 v50, 1152, v50
    v_lshl_add_u32 v50, v3, 6, v50
    v_and_b32 v49, 7, v2
    v_lshl_add_u32 v50, v49, 1, v50""")
    for u in range(5): A(f"s_mov_b32 s{81+u}, {H3+1024*u}")
    zero16()
    if seq: A("s_barrier")
    poll(ld4, range(G+3, G+20, 4), 38)
    for u in range(5):
        A(f"v_and_b32 v{G+4*u+3}, 0xffff0000, v{G+4*u+1}\nv_lshlrev_b32 v{G+4*u+2}, 16, v{G+4*u+1}\nv_and_b32 v{G+4*u+1}, 0xffff0000, v{G+4*u}\nv_lshlrev_b32 v{G+4*u}, 16, v{G+4*u}")
    c32 = c8
    def lnsum(first):
        dppred("v_add_f32", [40], c8); swapred("v_add_f32", [40], 41, 16); swapred("v_add_f32", [40], 41, 32)
    A(f"v_add_f32 v40, v{G}, v{G+1}")
    for j in range(2, 20): A(f"v_add_f32 v40, v40, v{G+j}")
    lnsum(1)
    A(f"v_mul_f32 v40, {f2u(1/576)}, v40")
    for j in range(16): A(f"v_sub_f32 v{G+j}, v{G+j}, v40")
    A("s_mov_b32 exec_hi, 0")
    for j in range(16, 20): A(f"v_sub_f32 v{G+j}, v{G+j}, v40")
    A(f"s_mov_b32 exec_hi, -1\nv_mul_f32 v40, v{G}, v{G}")
    for j in range(1, 20): A(f"v_fmac_f32 v40, v{G+j}, v{G+j}")
    lnsum(0)
    A(f"v_mov_b32 v41, {f2u(1e-5)}\nv_fmac_f32 v41, {f2u(1/576)}, v40\nv_rsq_f32 v40, v41\ns_nop 0")
    for j in range(20): A(f"v_mul_f32 v{G+j}, v{G+j}, v40")
    for j in range(10): A(f"v_cvt_pk_bf16_f32 v{G+j}, v{G+2*j}, v{G+2*j+1}")
    for j in range(10):
        if j == 8: A("s_mov_b32 exec_hi, 0")
        o = L_XN + 256*(j//2) + 32*(j % 2)
        A(f"ds_write_b16 v50, v{G+j} offset:{o}\nds_write_b16_d16_hi v50, v{G+j} offset:{o+16}")
    A("s_mov_b32 exec_hi, -1\ns_waitcnt lgkmcnt(0)\ns_barrier")
    stamp(4)
    A("L_end:")
    if stamps:
        A(f"""s_cmp_eq_u32 s93, 0
        s_cbranch_scc1 L_exit
        v_lshlrev_b32 v62, 2, v1
        s_lshl_b32 s92, s2, 6
        s_add_u32 s92, s92, {STAMP}
        s_mov_b32 exec_lo, s93
        s_mov_b32 exec_hi, 0
        buffer_store_dword v63, v62, s[12:15], s92 offen""")
    A("L_exit:\ns_endpgm")
    A(f'''.section .rodata,"a"
    .p2align 6
    .amdhsa_kernel {NAME}_kernel
    .amdhsa_next_free_vgpr 256
    .amdhsa_next_free_sgpr 102
    .amdhsa_accum_offset 256
    .amdhsa_group_segment_fixed_size 0
    .amdhsa_kernarg_size 104
    .amdhsa_user_sgpr_count 2
    .amdhsa_user_sgpr_kernarg_segment_ptr 1
    .amdhsa_system_sgpr_workgroup_id_x 1
    .end_amdhsa_kernel''')
    if warm: L = add_pads(L, "L_tail:", "L_end:", warm)
    if ldpol: L = [(x.replace(" sc1", ["", " sc0 sc1", " sc1 nt", " sc0 sc1 nt"][ldpol]) if x.startswith("buffer_load") else x) for x in L]
    if stpol: L = [(x.replace(" sc1", ["", " sc0 sc1", " sc1 nt", " sc0 sc1 nt"][stpol]) if x.startswith("buffer_store") else x) for x in L]
    return "\n".join(L) + "\n"

if __name__ == "__main__":
    out = sys.argv[1]; kw = {}
    for a in sys.argv[2:]:
        k, v = a.split("="); kw[k] = int(v)
    ref = open("cdna_kernels/" + NAME + ".s.ref").read().split("\n") if not kw.get("stamps") else []
    hdr = "\n".join(l for l in ref if l.startswith(";") and "@launch" not in l)
    open(out, "w").write(gen(header=hdr, **kw))
```

```python
import sys, struct
NAME = "sequential_preLN__gqa_block_cached__dense_activation_gelu__decode"
QBOX, NONCE, H3, H1, H2, H4, STAMP = 0x0, 0x40000, 0x48000, 0x80000, 0x100000, 0x600000, 0x10000000
L_XN, L_Q, L_CNT, L_ACC, L_ML, L_W1 = 0x0, 0xA00, 0xC00, 0x1000, 0x3000, 0x4000
def f2u(x): return "0x%08x" % struct.unpack("<I", struct.pack("<f", x))[0]
SPIN = 1 << 18
CNTB = 0x50000

def add_pads(L, start, end, spacing):
    import subprocess, re, os
    open("_p.s", "w").write("\n".join(x for x in L if "L_pad0" not in x) + "\n")
    subprocess.run(["clang", "-x", "assembler", "-target", "amdgcn-amd-amdhsa", "-mcpu=gfx950", "-c", "_p.s", "-o", "_p.o"], check=True)
    d = subprocess.run(["llvm-objdump", "-d", "_p.o"], capture_output=True, text=True).stdout
    sizes = [4*len(m.group(1).split()) for m in re.finditer(r"// [0-9A-F]+: ((?:[0-9A-F]{8} ?)+)", d)]
    isins = lambda x: x and not x.startswith((";", ".")) and not x.endswith(":")
    out = []; k = 0; inreg = False; dist = 0; n = 0
    for x in L:
        if x == start:
            inreg = True; out.append(x); out.append("PAD"); dist = 4; continue
        if x == end and inreg:
            inreg = False; out.append("PAD")
        if isins(x) and "L_pad0" not in x:
            sz = sizes[k]; k += 1
            if inreg:
                if dist + sz > spacing: out.append("PAD"); dist = 4
                dist += sz
        out.append(x)
    tot = out.count("PAD"); res = []
    for x in out:
        if x == "PAD":
            res.append(f"L_pad{n}:"); n += 1
            res.append(f"s_cbranch_execz L_pad{n}" if n < tot else "s_cbranch_execz L_warmret")
        else: res.append(x)
    sys.stderr.write(f"pads {tot}\n")
    return res

def gen(mp1=-1, mp2=-1, NBUF=6, stamps=False, wlate=0, pace=-1, seq=0, slp=0, qslp=0, noclr=0, stpol=0, nopf=0, warm=0, nowt=0, exact=0, clr0=0, pair=0, ldpol=0, dyn=0, header=""):
    L = []
    def A(s): L.extend(x.strip() for x in s.strip().split("\n"))
    nlab = [0]
    def lab(p):
        nlab[0] += 1; return f"L_{p}{nlab[0]}"
    def srd(d, base, size):
        A(f"s_mov_b32 s{d}, s{base}\ns_and_b32 s{d+1}, s{base+1}, 0xffff\ns_mov_b32 s{d+2}, {size}\ns_mov_b32 s{d+3}, 0x20000")
    def stamp(i):
        if not stamps: return
        A(f"""s_memrealtime s[90:91]
        s_waitcnt lgkmcnt(0)
        v_writelane_b32 v63, s90, {i}
        s_bitset1_b32 s93, {i}""")
    def endp():
        if stamps: A("s_branch L_end")
        else: A("s_endpgm")
    def stamp0(i):
        if not stamps: return
        l = lab("st"); A(f"s_cmp_lg_u32 s3, 0\ns_cbranch_scc1 {l}"); stamp(i); A(f"{l}:")
    def dpp(op, d, a, b, ctl): A(f"{op}_dpp v{d}, v{a}, v{b} {ctl} row_mask:0xf bank_mask:0xf")
    def swapred(op, regs, tmp, which):
        for i, r in enumerate(regs): A(f"v_mov_b32 v{tmp+i}, v{r}")
        A("s_nop 1")
        for i, r in enumerate(regs): A(f"v_permlane{which}_swap_b32 v{r}, v{tmp+i}")
        for i, r in enumerate(regs): A(f"{op} v{r}, v{r}, v{tmp+i}")
    def dppred(op, regs, ctls):
        for c in ctls:
            if len(regs) < 3: A("s_nop 1")
            for r in regs: dpp(op, r, r, r, c)
    def anysent(regs, t):
        regs = list(regs)
        A(f"v_xor_b32 v{t}, s80, v{regs[0]}")
        for r in regs[1:]: A(f"v_xor_b32 v{t+1}, s80, v{r}\nv_or_b32 v{t}, v{t}, v{t+1}")
        A(f"v_cmp_ne_u32 vcc, 0, v{t}")
    def poll(loads, regs, t):
        l0, l1 = lab("poll"), lab("done")
        A(f"s_mov_b32 s70, {SPIN}\n{l0}:")
        loads()
        A("s_waitcnt vmcnt(0)")
        anysent(regs, t)
        A(f"s_cbranch_vccz {l1}")
        if slp: A(f"s_sleep {slp}")
        A(f"s_sub_u32 s70, s70, 1\ns_cbranch_scc0 {l0}\n{l1}:")
    def pack24(d):
        A("s_mov_b32 s68, 0x07060501\ns_mov_b32 s69, 0x07060502\ns_mov_b32 s79, 0x07060503")
        for r, sg in enumerate((68, 69, 79)): A(f"v_perm_b32 v{d+r}, v{d+r}, v{d+3}, s{sg}")
    def unpack24(d):
        A(f"v_perm_b32 v{d+3}, v{d+1}, v{d}, s68\nv_perm_b32 v{d+3}, v{d+2}, v{d+3}, s69")
    SELU = "s_mov_b32 s68, 0x0c0c0400\ns_mov_b32 s69, 0x0401000c"
    def bmask(dst, src):
        for r in range(4): A(f"v_and_b32 v{dst+r}, v{6+r}, v{src}")
    def MF(d, a, b, c=None):
        cs = f"v[{d}:{d+3}]" if c is None else c
        A(f"v_mfma_f32_16x16x32_bf16 v[{d}:{d+3}], v[{a}:{a+3}], v[{b}:{b+3}], {cs}")
    def lnstats(vals, t):
        A(f"v_add_f32 v{t}, v{vals[0]}, v{vals[1]}")
        for v in vals[2:]: A(f"v_add_f32 v{t}, v{t}, v{v}")
        dppred("v_add_f32", [t], ["row_ror:8", "row_ror:4", "row_ror:2", "row_ror:1"])
        swapred("v_add_f32", [t], t+1, 16)
        A(f"v_mul_f32 v{t}, {f2u(1/576)}, v{t}")
        for v in vals: A(f"v_sub_f32 v{v}, v{v}, v{t}")
        A(f"v_mul_f32 v{t}, v{vals[0]}, v{vals[0]}")
        for v in vals[1:]: A(f"v_fmac_f32 v{t}, v{v}, v{v}")
        dppred("v_add_f32", [t], ["row_ror:8", "row_ror:4", "row_ror:2", "row_ror:1"])
        swapred("v_add_f32", [t], t+1, 16)
        A(f"v_mov_b32 v{t+1}, {f2u(1e-5)}\nv_fmac_f32 v{t+1}, {f2u(1/576)}, v{t}\nv_rsq_f32 v{t}, v{t+1}\ns_nop 0")
        for v in vals: A(f"v_mul_f32 v{v}, v{v}, v{t}")
    SL = 64
    NT = 256
    def tile_loads(k, sreg):
        b = SL + 32*k
        for t in range(4): A(f"buffer_load_dwordx4 v[{b+4*t}:{b+4*t+3}], v4, s[4:7], s{sreg} offen offset:{64*t} nt")
        for t in range(4): A(f"buffer_load_dwordx4 v[{b+16+4*t}:{b+16+4*t+3}], v5, s[8:11], s{sreg} offen offset:{256*t} nt")
    def prefetch(paced=False):
        A("s_lshl_b32 s67, s3, 12\ns_add_u32 s67, s67, s66")
        if dyn: A("s_lshl_b32 s68, s64, 15\ns_add_u32 s67, s67, s68")
        for k in range(NBUF):
            tile_loads(k, 67)
            if k + 1 < NBUF:
                A("s_add_u32 s67, s67, %d" % (0x40000 if dyn else 0x8000))
                if paced and pace >= 0: A(f"s_waitcnt vmcnt({pace})")
    WO, W1, W2, B1 = 64, 80, 104, 136
    def load_wo():
        l = lab("wo"); A(f"s_cmp_gt_u32 s3, 4\ns_cbranch_scc1 {l}")
        srd(20, 44, 4096*1152)
        A(f"""s_lshl_b32 s67, s62, 8
        s_lshl_b32 s68, s63, 7
        s_add_u32 s67, s67, s68
        s_add_u32 s67, s67, s64
        s_mul_i32 s67, s67, 1152
        s_lshl_b32 s68, s3, 8
        s_add_u32 s67, s67, s68
        v_mul_u32_u24 v48, {32*1152}, v3
        v_lshl_add_u32 v48, v2, 4, v48""")
        for t in range(4):
            A(f"buffer_load_dwordx4 v[{WO+4*t}:{WO+4*t+3}], v48, s[20:23], s67 offen nt")
            if t < 3: A("s_add_u32 s67, s67, 9216")
        A(f"{l}:")
    def load_mlp(do1=True, do2=True, paced=False):
        l = lab("mlp"); l2 = lab("mlp")
        A(f"s_cmp_ge_u32 s2, 144\ns_cbranch_scc1 {l}\ns_cmp_gt_u32 s3, 5\ns_cbranch_scc1 {l}")
        if do1: load_w1(paced)
        if do2: load_w2(l, paced)
        A(f"{l}:")
    def load_w1(paced):
        srd(24, 48, 576*9216)
        A(f"""s_mul_i32 s67, s3, {96*9216}
        s_lshl_b32 s68, s89, 6
        s_add_u32 s67, s67, s68
        v_mul_u32_u24 v49, {8*9216}, v3
        v_lshl_add_u32 v49, v2, 2, v49""")
        for i in range(24):
            A(f"buffer_load_dword v{W1+i}, v49, s[24:27], s67 offen {'' if pair == 1 else 'nt'}")
            if i < 23: A(f"s_add_u32 s67, s67, {9216 if i % 8 != 7 else 25*9216}")
            if paced and mp1 >= 0 and i >= mp1: A(f"s_waitcnt vmcnt({mp1})")
    def load_w2(l, paced):
        A(f"s_cmp_gt_u32 s3, 4\ns_cbranch_scc1 {l}")
        srd(28, 52, 4608*1152)
        A(f"""s_mul_i32 s67, s89, {32*1152}
        s_lshl_b32 s68, s3, 8
        s_add_u32 s67, s67, s68
        v_mul_u32_u24 v50, {8*1152}, v3
        v_lshl_add_u32 v50, v2, 4, v50""")
        for t in range(8):
            A(f"buffer_load_dwordx4 v[{W2+4*t}:{W2+4*t+3}], v50, s[28:31], s67 offen offset:{1152*(t%4)} nt")
            if t == 3: A("s_add_u32 s67, s67, 4608")
            if paced and mp2 >= 0: A(f"s_waitcnt vmcnt({mp2})")
        srd(24, 50, 4608*2)
        A(f"""v_and_b32 v51, 7, v2
        v_lshl_add_u32 v51, v3, 3, v51
        v_lshlrev_b32 v51, 1, v51
        s_lshl_b32 s67, s89, 6
        buffer_load_ushort v{B1}, v51, s[24:27], s67 offen""")
    def quad_store(d, box):
        A(f"""s_lshl_b32 s67, s3, 18
        s_lshl_b32 s68, s2, 5
        s_add_u32 s67, s67, s68
        s_add_u32 s67, s67, {box}
        s_nop 0""")
        pack24(d)
        A(f"""v_mov_b32 v{d+3}, s80
        s_cmp_eq_u32 s3, 4
        s_cselect_b32 exec_hi, 0, -1
        buffer_store_dwordx4 v[{d}:{d+3}], v52, s[12:15], s67 offen sc1
        s_mov_b32 exec_hi, -1""")
    def quad_reduce(d):
        dppred("v_add_f32", [d, d+1, d+2, d+3], ["quad_perm:[2,3,0,1]", "row_ror:4", "row_ror:8"])
        swapred("v_add_f32", [d, d+1, d+2, d+3], 44, 16)
        swapred("v_add_f32", [d, d+1, d+2, d+3], 44, 32)
    def rbf(r, t=None):
        A(f"v_cvt_pk_bf16_f32 v{r}, v{r}, v{r}\nv_and_b32 v{r}, 0xffff0000, v{r}")

    A(header)
    A("; @launch grid=(256,1,1) block=(512,1,1) lds=90000")
    A('.amdgcn_target "amdgcn-amd-amdhsa--gfx950"\n.text')
    A(f".globl {NAME}_kernel\n.p2align 8\n.type {NAME}_kernel,@function\n{NAME}_kernel:")
    A(f"""s_cmp_ge_u32 s2, 256
    s_cbranch_scc1 L_exit
    s_mov_b32 s93, 0
    s_load_dwordx16 s[36:51], s[0:1], 0
    s_load_dwordx8 s[52:59], s[0:1], 64
    s_load_dwordx2 s[60:61], s[0:1], 96
    v_lshrrev_b32 v48, 6, v0
    v_and_b32 v1, 63, v0
    v_readfirstlane_b32 s3, v48
    v_and_b32 v2, 15, v1
    v_lshrrev_b32 v3, 4, v1
    v_lshlrev_b32 v4, 8, v2
    v_lshl_add_u32 v4, v3, 4, v4
    v_lshlrev_b32 v5, 4, v2
    v_lshl_add_u32 v5, v3, 10, v5
    v_mov_b32 v57, 0
    v_lshlrev_b32 v61, 4, v1
    s_lshr_b32 s62, s2, 3
    s_and_b32 s62, s62, 15
    s_lshr_b32 s63, s2, 7
    s_and_b32 s64, s2, 7
    s_lshl_b32 s65, s63, 3
    s_add_u32 s65, s65, s64
    s_lshl_b32 s66, s2, 20
    s_andn2_b32 s89, s2, 15
    s_lshl_b32 s67, s64, 1
    s_add_u32 s89, s89, s67
    s_bfe_u32 s67, s2, 0x10003
    s_add_u32 s89, s89, s67
    {"" if pair else "s_mov_b32 s89, s2"}
    s_mov_b32 s76, {f2u(1.4426950408889634 * 128**-0.5)}
    s_mov_b32 s77, {f2u(-1.4426950408889634 * 128**-0.5)}
    s_waitcnt lgkmcnt(0)
    s_load_dword s80, s[60:61], {NONCE}""")
    if dyn: A(f"""s_lshr_b32 s94, s2, 3
    s_lshl_b32 s66, s94, 23
    s_mul_i32 s94, s94, {dyn}
    s_add_u32 s94, s94, {CNTB}
    s_load_dword s95, s[60:61], s94""")
    srd(4, 38, 0x10000000); srd(8, 40, 0x10000000); srd(12, 60, 0x40000000)
    A("s_cmp_eq_u32 s3, 0\ns_cbranch_scc1 L_qphase")
    if nopf: A("s_waitcnt lgkmcnt(0)\ns_barrier")
    prefetch(True)
    A("L_masks:\ns_waitcnt lgkmcnt(0)\ns_add_u32 s80, s80, 0x9e3779b9")
    A("""v_and_b32 v48, 1, v2
    v_lshlrev_b32 v48, 4, v48
    v_mov_b32 v49, 0xffff
    v_lshlrev_b32 v49, v48, v49
    v_bfe_u32 v48, v2, 1, 2""")
    for r in range(4): A(f"v_cmp_eq_u32 vcc, {r}, v48\ns_nop 1\nv_cndmask_b32 v{6+r}, 0, v49, vcc")
    A("s_cmp_eq_u32 s3, 0\ns_cbranch_scc1 L_qphase2\ns_barrier\ns_branch L_main")
    A("L_qphase:")
    stamp(0)
    srd(20, 36, 2304); srd(24, 42, 576*8192)
    XQ = 200
    A(f"""v_lshrrev_b32 v48, 5, v1
    v_and_b32 v49, 31, v1
    v_mul_u32_u24 v50, 1152, v48
    v_lshl_add_u32 v51, v49, 4, v50
    v_lshl_add_u32 v50, v49, 2, v50
    buffer_load_dwordx4 v[{XQ}:{XQ+3}], v51, s[20:23], 0 offen
    buffer_load_dwordx4 v[{XQ+4}:{XQ+7}], v51, s[20:23], 0 offen offset:512
    buffer_load_dword v{XQ+8}, v50, s[20:23], 0 offen offset:1024
    s_lshl_b32 s67, s62, 1
    s_add_u32 s67, s67, s63
    s_lshl_b32 s67, s67, 8
    s_mul_i32 s68, s64, {72*8192}
    s_add_u32 s67, s67, s68
    v_mul_u32_u24 v52, {18*8192}, v3
    v_lshl_add_u32 v52, v2, 4, v52""")
    for t in range(18):
        A(f"buffer_load_dwordx4 v[{SL+4*t}:{SL+4*t+3}], v52, s[24:27], s67 offen nt")
        if t < 17: A("s_add_u32 s67, s67, 8192")
    if nopf == 2: A("s_barrier")
    stamp(11)
    A("""s_waitcnt vmcnt(18)
    s_branch L_masks
    L_qphase2:""")
    XF = 210
    for i in range(9): A(f"v_lshlrev_b32 v{XF+2*i}, 16, v{XQ+i}\nv_and_b32 v{XF+2*i+1}, 0xffff0000, v{XQ+i}")
    lnstats(list(range(XF, XF+18)), 40)
    for i in range(9): A(f"v_cvt_pk_bf16_f32 v{XQ+i}, v{XF+2*i}, v{XF+2*i+1}")
    A(f"""ds_write_b128 v51, v[{XQ}:{XQ+3}] offset:{L_XN}
    ds_write_b128 v51, v[{XQ+4}:{XQ+7}] offset:{L_XN+512}
    ds_write_b32 v50, v{XQ+8} offset:{L_XN+1024}
    v_lshrrev_b32 v48, 3, v2
    v_mul_u32_u24 v48, 1152, v48
    v_mul_u32_u24 v49, 36, v3
    s_mul_i32 s67, s64, 144
    v_add3_u32 v48, v48, v49, s67
    v_mov_b32 v49, {8*NBUF}
    v_mov_b32 v54, 0
    ds_write_b32 v54, v49 offset:{L_CNT}
    s_waitcnt lgkmcnt(0)""")
    stamp(13)
    for i in range(9): A(f"ds_read_b32 v{XQ+i}, v48 offset:{L_XN+4*i}")
    A("s_mov_b32 s68, 0x01000100\ns_mov_b32 s69, 0x03020302\ns_waitcnt vmcnt(0) lgkmcnt(0)")
    stamp(8)
    if nopf == 1: A("s_barrier")
    for t in range(18):
        bs = 40 + 4*(t % 2)
        A(f"v_perm_b32 v55, v{XQ+t//2}, v{XQ+t//2}, s{68+t%2}")
        bmask(bs, 55)
        if t > 0: MF(26, SL+4*(t-1), 40+4*((t-1) % 2), "0" if t == 1 else None)
    A("s_nop 1"); MF(26, SL+68, 44)
    A(f"""v_lshrrev_b32 v48, 3, v2
    v_lshlrev_b32 v48, 13, v48
    v_and_b32 v49, 7, v2
    v_lshl_add_u32 v49, v3, 3, v49
    v_lshl_add_u32 v48, v49, 4, v48
    s_lshl_b32 s67, s62, 14
    s_lshl_b32 s68, s63, 12
    s_add_u32 s67, s67, s68
    s_lshl_b32 s68, s64, 9
    s_add_u32 s67, s67, s68
    s_nop 0""")
    pack24(26)
    A("v_mov_b32 v29, s80\nbuffer_store_dwordx4 v[26:29], v48, s[12:15], s67 offen sc1")
    stamp(9)
    A(f"""
    v_lshrrev_b32 v48, 5, v1
    v_and_b32 v49, 31, v1
    v_lshlrev_b32 v50, 12, v48
    v_lshl_add_u32 v50, v49, 4, v50
    s_lshl_b32 s67, s62, 14
    s_lshl_b32 s68, s63, 13
    s_add_u32 s67, s67, s68""")
    A(f"""v_lshrrev_b32 v51, 3, v49
    v_lshlrev_b32 v51, 6, v51
    v_and_b32 v49, 7, v49
    v_lshl_add_u32 v51, v49, 1, v51
    v_lshl_add_u32 v51, v48, 8, v51
    {SELU}
    s_mov_b32 s70, {SPIN}
    L_qpoll:""")
    for u in range(8): A(f"buffer_load_dwordx4 v[{SL+4*u}:{SL+4*u+3}], v50, s[12:15], s67 offen offset:{512*u} sc1")
    A(f"s_waitcnt vmcnt(0)\nv_xor_b32 v38, s80, v{SL+3}")
    for u in range(1, 8): A(f"v_xor_b32 v39, s80, v{SL+4*u+3}\nv_or_b32 v38, v38, v39")
    A("v_cmp_ne_u32 vcc, 0, v38\ns_cbranch_vccz L_qgot\ns_sub_u32 s70, s70, 1\ns_cbranch_scc0 L_qpoll\nL_qgot:")
    stamp(10)
    for u in range(8): unpack24(SL+4*u)
    for u in range(1, 8):
        for r in range(4): A(f"v_add_f32 v{SL+r}, v{SL+r}, v{SL+4*u+r}")
    for r in range(4): A(f"v_cvt_pk_bf16_f32 v{SL+r}, v{SL+r}, v{SL+r}")
    for r in range(4): A(f"ds_write_b16 v51, v{SL+r} offset:{L_Q+16*r}")
    A("s_waitcnt lgkmcnt(0)\ns_barrier")
    stamp(1)
    prefetch()
    A(f"""L_main:
    v_lshrrev_b32 v48, 3, v2
    v_lshlrev_b32 v48, 8, v48
    v_lshl_add_u32 v48, v3, 4, v48""")
    for t in range(4): A(f"ds_read_b128 v[{10+4*t}:{13+4*t}], v48 offset:{L_Q+64*t}")
    A(f"""v_mov_b32 v26, 0
    v_mov_b32 v27, 0
    v_mov_b32 v28, 0
    v_mov_b32 v29, 0
    v_mov_b32 v30, 0xff800000
    v_mov_b32 v31, 0
    v_mov_b32 v52, {L_CNT}
    v_mov_b32 v55, 1
    s_mov_b32 s71, {NBUF}
    s_waitcnt lgkmcnt(0)""")
    if warm: A("s_cmp_lg_u32 s3, 7\ns_cbranch_scc1 L_loop\ns_mov_b64 exec, 0\ns_branch L_pad0\nL_warmret:\ns_mov_b64 exec, -1")
    if dyn: A(f"""s_sub_u32 s95, s95, {64*(NBUF+1)}
    s_lshl_b32 s67, s64, 3
    s_add_u32 s67, s67, s3
    s_add_u32 s67, s67, {64*NBUF}
    s_add_u32 s67, s67, s95
    v_mov_b32 v54, s67
    v_mov_b32 v52, 0
    s_waitcnt vmcnt({8*(NBUF-1)})""")
    A("L_loop:")
    for k in range(NBUF):
        b = SL + 32*k
        A(f"s_waitcnt vmcnt({(9 if dyn else 8)*(NBUF-1)})")
        for t in range(4): MF(32, b+4*t, 10+4*t, "0" if t == 0 else None)
        A("s_nop 7" if dyn else "s_mov_b64 exec, 1\nds_add_rtn_u32 v54, v52, v55\ns_mov_b64 exec, -1\ns_nop 4")
        A("""v_max3_f32 v36, v32, v33, v34
        v_max_f32 v36, v36, v35""")
        swapred("v_max_f32", [36], 37, 16)
        swapred("v_max_f32", [36], 37, 32)
        A("""v_max_f32 v36, v36, v30
        v_mul_f32 v37, s77, v36
        v_fma_f32 v38, v30, s76, v37
        v_fma_f32 v32, v32, s76, v37
        v_exp_f32 v38, v38
        v_exp_f32 v32, v32
        v_fma_f32 v33, v33, s76, v37
        v_fma_f32 v34, v34, s76, v37
        v_fma_f32 v35, v35, s76, v37
        v_mov_b32 v30, v36
        v_cvt_pk_bf16_f32 v39, v32, v32
        v_exp_f32 v33, v33
        v_exp_f32 v34, v34
        v_exp_f32 v35, v35
        v_mul_f32 v26, v26, v38
        v_mul_f32 v27, v27, v38
        v_mul_f32 v28, v28, v38
        v_mul_f32 v29, v29, v38
        v_fma_f32 v31, v31, v38, v32""")
        bmask(40, 39)
        for r in range(1, 4):
            A(f"v_cvt_pk_bf16_f32 v39, v{32+r}, v{32+r}\nv_add_f32 v31, v31, v{32+r}")
            MF(26, b+16+4*(r-1), 40+4*((r-1) % 2))
            bmask(40+4*(r % 2), 39)
        A("s_waitcnt %s\nv_readfirstlane_b32 s67, v54" % ("vmcnt(8)" if dyn else "lgkmcnt(0)"))
        MF(26, b+28, 44)
        ls, ln = lab("skip"), lab("next")
        if dyn:
            assert NBUF == 2
            A(f"""s_sub_u32 s67, s67, s95
            s_cmp_ge_u32 s67, 2048
            s_cbranch_scc1 {ls}
            v_mov_b32 v54, 1
            s_lshl_b32 s67, s67, 12
            s_add_u32 s67, s67, s66
            s_mov_b64 exec, 1
            buffer_atomic_add v54, v52, s[12:15], s94 offen sc0 sc1
            s_mov_b64 exec, -1""")
        else: A(f"s_cmp_ge_u32 s67, {NT}\ns_cbranch_scc1 {ls}\ns_lshl_b32 s67, s67, 12\ns_add_u32 s67, s67, s66")
        tile_loads(k, 67)
        A(f"s_branch {ln}" if k + 1 < NBUF else "s_branch L_loop")
        A(f"{ls}:\ns_sub_u32 s71, s71, 1\ns_cmp_eq_u32 s71, 0\ns_cbranch_scc1 L_tail")
        if not exact: A("buffer_load_dword v56, v53, s[16:19], 0 offen sc1\ns_waitcnt vmcnt(0)")
        else:
            tgt = ln if k + 1 < NBUF else "L_loop"
            for j in range(NBUF-1, 0, -1):
                lj = lab("dr")
                if j > 1: A(f"s_cmp_lg_u32 s71, {j}\ns_cbranch_scc1 {lj}")
                A(f"s_waitcnt vmcnt({8*(j-1)})")
                if j > 1: A(f"s_branch {tgt}\n{lj}:")
        A(f"{ln}:" if k + 1 < NBUF else "s_branch L_loop")
    A("L_tail:")
    if not nowt: load_wo()
    if wlate == 0 and not nowt: load_mlp()
    if wlate == 2: load_mlp(True, False)
    if wlate == 3: load_mlp(False, True)
    swapred("v_add_f32", [31], 37, 16)
    swapred("v_add_f32", [31], 37, 32)
    A(f"""v_mul_f32 v30, s76, v30
    s_lshl_b32 s67, s3, 9
    v_lshl_add_u32 v54, v1, 3, s67
    v_lshlrev_b32 v55, 1, v54
    ds_write_b64 v54, v[30:31] offset:{L_ML}
    ds_write_b128 v55, v[26:29] offset:{L_ACC}
    v_lshrrev_b32 v52, 1, v1
    v_lshlrev_b32 v52, 13, v52
    v_and_b32 v53, 1, v1
    v_lshl_add_u32 v52, v53, 4, v52
    s_waitcnt lgkmcnt(0)
    s_barrier
    s_cmp_eq_u32 s3, 5
    s_cbranch_scc1 L_w5
    s_cmp_eq_u32 s3, 6
    s_cbranch_scc1 L_w6
    s_cmp_eq_u32 s3, 7
    s_cbranch_scc1 L_end
    s_cmp_lg_u32 s3, 0
    s_cbranch_scc1 L_h1""")
    stamp(2)
    CA, CM = 160, 192
    for w in range(8): A(f"ds_read_b64 v[{CM+2*w}:{CM+2*w+1}], v54 offset:{L_ML+512*w}")
    for w in range(8): A(f"ds_read_b128 v[{CA+4*w}:{CA+4*w+3}], v55 offset:{L_ACC+1024*w}")
    A(f"s_waitcnt lgkmcnt(8)\nv_max3_f32 v30, v{CM}, v{CM+2}, v{CM+4}\nv_max3_f32 v30, v30, v{CM+6}, v{CM+8}\nv_max3_f32 v30, v30, v{CM+10}, v{CM+12}\nv_max_f32 v30, v30, v{CM+14}")
    for w in range(8): A(f"v_sub_f32 v{CM+2*w}, v{CM+2*w}, v30")
    for w in range(8): A(f"v_exp_f32 v{CM+2*w}, v{CM+2*w}")
    A(f"s_waitcnt lgkmcnt(0)\nv_mul_f32 v31, v{CM}, v{CM+1}")
    for r in range(4): A(f"v_mul_f32 v{26+r}, v{CM}, v{CA+r}")
    for w in range(1, 8):
        A(f"v_fmac_f32 v31, v{CM+2*w}, v{CM+2*w+1}")
        for r in range(4): A(f"v_fmac_f32 v{26+r}, v{CM+2*w}, v{CA+4*w+r}")
    A(f"""v_rcp_f32 v32, v31
    v_log_f32 v31, v31
    v_lshlrev_b32 v54, 10, v2
    v_lshl_add_u32 v54, v3, 4, v54
    s_lshl_b32 s67, s62, 14
    s_lshl_b32 s68, s65, 6
    s_add_u32 s67, s67, s68
    s_add_u32 s67, s67, {H1}""")
    for r in range(4): A(f"v_mul_f32 v{26+r}, v{26+r}, v32")
    A(f"""v_cvt_pk_bf16_f32 v26, v26, v27
    v_cvt_pk_bf16_f32 v27, v28, v29
    v_add_f32 v28, v30, v31
    v_mov_b32 v29, s80
    buffer_store_dwordx4 v[26:29], v54, s[12:15], s67 offen sc1
    L_h1:
    v_lshlrev_b32 v54, 6, v2
    v_lshl_add_u32 v54, v3, 4, v54
    s_lshl_b32 s67, s62, 4
    s_add_u32 s67, s67, s65
    s_lshl_b32 s67, s67, 10
    s_add_u32 s67, s67, {H1}""")
    poll(lambda: A("buffer_load_dwordx4 v[32:35], v54, s[12:15], s67 offen sc1"), [35], 38)
    A("""v_mov_b32 v38, v34
    v_mov_b32 v37, v34
    v_and_b32 v35, 0xffff0000, v33
    v_lshlrev_b32 v34, 16, v33
    v_and_b32 v33, 0xffff0000, v32
    v_lshlrev_b32 v32, 16, v32""")
    c8 = ["quad_perm:[1,0,3,2]", "quad_perm:[2,3,0,1]", "row_half_mirror"]
    dppred("v_max_f32", [38], c8)
    A("v_sub_f32 v37, v37, v38\nv_exp_f32 v37, v37\ns_nop 0")
    for r in range(4): A(f"v_mul_f32 v{32+r}, v{32+r}, v37")
    dppred("v_add_f32", [37, 32, 33, 34, 35], c8)
    A("v_rcp_f32 v37, v37\ns_nop 0")
    for r in range(4): A(f"v_mul_f32 v{32+r}, v{32+r}, v37")
    for t in range(4):
        A(f"v_cvt_pk_bf16_f32 v39, v{32+t}, v{32+t}")
        bmask(40+4*(t % 2), 39)
        if t > 0: MF(26, WO+4*(t-1), 40+4*((t-1) % 2), "0" if t == 1 else None)
    A("s_nop 1"); MF(26, WO+12, 44)
    A("s_nop 1")
    quad_store(26, H2)
    stamp0(7)
    A("s_cmp_ge_u32 s2, 144\ns_cbranch_scc1 L_end")
    if seq: A("s_barrier")
    if wlate == 1: load_mlp(True, True, True)
    if wlate == 2: load_mlp(False, True, True)
    if wlate == 3: load_mlp(True, False, True)
    A("L_mlp:\ns_mov_b32 s68, 0x05040100\ns_mov_b32 s69, 0x07060302\ns_waitcnt vmcnt(0)")
    FE = 160
    for i in range(3):
        for a in range(4):
            A(f"v_perm_b32 v{FE+8*i+a}, v{W1+8*i+2*a+1}, v{W1+8*i+2*a}, s68\nv_perm_b32 v{FE+8*i+4+a}, v{W1+8*i+2*a+1}, v{W1+8*i+2*a}, s69")
    A(f"""v_lshrrev_b32 v48, 3, v2
    v_mul_u32_u24 v48, 1152, v48
    v_lshl_add_u32 v48, v3, 4, v48
    s_mul_i32 s67, s3, 192
    v_add_u32 v48, s67, v48
    s_lshl_b32 s67, s3, 11
    v_lshl_add_u32 v49, v1, 4, s67
    v_and_b32 v50, 1, v2
    v_lshlrev_b32 v50, 10, v50
    v_lshl_add_u32 v50, v1, 4, v50
    v_bfe_u32 v51, v2, 1, 2
    v_lshl_add_u32 v50, v51, 2, v50
    s_barrier""")
    for i in range(3): A(f"ds_read_b128 v[{184+4*i}:{187+4*i}], v48 offset:{L_XN+64*i}")
    for i in range(3):
        A(f"s_waitcnt lgkmcnt({2-i})")
        MF(32, FE+8*i, 184+4*i, "0" if i == 0 else None)
        MF(36, FE+8*i+4, 184+4*i, "0" if i == 0 else None)
    A(f"""s_nop 6
    ds_write_b128 v49, v[32:35] offset:{L_W1}
    ds_write_b128 v49, v[36:39] offset:{L_W1+1024}
    s_waitcnt lgkmcnt(0)
    s_barrier
    s_cmp_eq_u32 s3, 5
    s_cbranch_scc1 L_w5b""")
    for w in range(6): A(f"ds_read_b32 v{32+w}, v50 offset:{L_W1+2048*w}")
    A(f"v_lshlrev_b32 v{B1}, 16, v{B1}\ns_waitcnt lgkmcnt(0)\nv_add_f32 v32, v32, v33\nv_add_f32 v34, v34, v35\nv_add_f32 v36, v36, v37\nv_add_f32 v32, v32, v34\nv_add_f32 v32, v32, v36")
    rbf(32); A(f"v_add_f32 v32, v32, v{B1}"); rbf(32)
    k0 = -2*0.7978845608028654*1.4426950408889634
    A(f"""v_mul_f32 v33, v32, v32
    v_mov_b32 v34, {f2u(k0)}
    v_fmac_f32 v34, {f2u(k0*0.044715)}, v33
    v_mul_f32 v33, v34, v32
    v_exp_f32 v33, v33
    s_nop 0
    v_add_f32 v33, 1.0, v33
    v_rcp_f32 v33, v33
    s_nop 0
    v_mul_f32 v32, v32, v33
    v_cvt_pk_bf16_f32 v32, v32, v32
    s_nop 1""")
    for t in range(8):
        A(f"v_mov_b32_dpp v39, v32 row_newbcast:{t} row_mask:0xf bank_mask:0x3\nv_mov_b32_dpp v39, v32 row_newbcast:{8+t} row_mask:0xf bank_mask:0xc")
        bmask(40+4*(t % 2), 39)
        if t > 0: MF(26, W2+4*(t-1), 40+4*((t-1) % 2), "0" if t == 1 else None)
    A("s_nop 1"); MF(26, W2+28, 44)
    A("s_nop 1")
    quad_store(26, H4)
    endp()
    A(f"""L_w5:
    s_cmp_ge_u32 s2, 144
    s_cbranch_scc1 L_end
    s_lshl_b32 s67, s2, 1
    v_add_u32 v53, s67, v53
    v_lshrrev_b32 v54, 4, v53
    v_lshlrev_b32 v54, 5, v54
    v_and_b32 v55, 7, v53
    v_add_u32 v54, v54, v55
    v_bfe_u32 v56, v53, 3, 1
    v_mul_u32_u24 v56, 576, v56
    v_add_u32 v56, v56, v54
    v_lshlrev_b32 v54, 1, v54
    v_lshlrev_b32 v57, 1, v56""")
    srd(20, 36, 2304); srd(28, 54, 1152)
    for r in range(4): A(f"buffer_load_ushort v{240+r}, v57, s[20:23], 0 offen offset:{16*r}\nbuffer_load_ushort v{244+r}, v54, s[28:31], 0 offen offset:{16*r}")
    A(f"""{SELU}
    v_lshlrev_b32 v61, 4, v1
    s_lshl_b32 s78, s2, 13
    s_add_u32 s81, s78, {H2}""")
    for u in range(1, 8): A(f"s_add_u32 s{81+u}, s81, {1024*u}")
    G = 200
    if seq: A("s_barrier")
    def ld2():
        for u in range(8): A(f"buffer_load_dwordx4 v[{G+4*u}:{G+4*u+3}], v61, s[12:15], s{81+u} offen sc1")
    poll(ld2, range(G+3, G+32, 4), 38)
    for u in range(8): unpack24(G+4*u)
    for u in (4, 2, 1):
        for j in range(4*u): A(f"v_add_f32 v{G+j}, v{G+j}, v{G+4*u+j}")
    quad_reduce(G)
    A(f"v_cvt_pk_bf16_f32 v{G}, v{G}, v{G+1}\nv_cvt_pk_bf16_f32 v{G+2}, v{G+2}, v{G+3}")
    for r in range(4): A(f"v_lshlrev_b32 v{240+r}, 16, v{240+r}")
    def unp(srcs, d):
        for i, x in enumerate(srcs): A(f"v_and_b32 v{d+2*i+1}, 0xffff0000, v{x}\nv_lshlrev_b32 v{d+2*i}, 16, v{x}")
    unp([G, G+2], G+4)
    for r in range(4): A(f"v_add_f32 v{240+r}, v{240+r}, v{G+4+r}")
    A(f"""v_cvt_pk_bf16_f32 v248, v240, v241
    v_cvt_pk_bf16_f32 v249, v242, v243
    v_mov_b32 v250, s80
    v_mov_b32 v251, s80
    s_lshl_b32 s67, s2, 5
    s_add_u32 s67, s67, {H3}
    s_mov_b64 exec, 3
    buffer_store_dwordx4 v[248:251], v61, s[12:15], s67 offen sc1
    s_mov_b64 exec, -1""")
    stamp(3)
    if wlate in (1, 3): load_mlp(True, False)
    A(f"""s_branch L_mlp
    L_w5b:
    s_add_u32 s81, s78, {H4}""")
    for u in range(1, 5): A(f"s_add_u32 s{81+u}, s81, {1024*u}")
    stamp(5)
    def zero16():
        for j in range(3): A(f"v_mov_b32 v{G+16+j}, 0")
        A(f"v_mov_b32 v{G+19}, s80")
    zero16(); A(SELU)
    def ld4():
        for u in range(4): A(f"buffer_load_dwordx4 v[{G+4*u}:{G+4*u+3}], v61, s[12:15], s{81+u} offen sc1")
        A(f"s_mov_b32 exec_hi, 0\nbuffer_load_dwordx4 v[{G+16}:{G+19}], v61, s[12:15], s85 offen sc1\ns_mov_b32 exec_hi, -1")
    poll(ld4, range(G+3, G+20, 4), 38)
    for u in range(5): unpack24(G+4*u)
    for j in range(4): A(f"v_add_f32 v{G+j}, v{G+j}, v{G+16+j}")
    for u in (2, 1):
        for j in range(4*u): A(f"v_add_f32 v{G+j}, v{G+j}, v{G+4*u+j}")
    quad_reduce(G)
    A(f"v_cvt_pk_bf16_f32 v{G}, v{G}, v{G+1}\nv_cvt_pk_bf16_f32 v{G+2}, v{G+2}, v{G+3}")
    for r in range(4): A(f"v_lshlrev_b32 v{244+r}, 16, v{244+r}")
    unp([G, G+2], G+4)
    for r in range(4): A(f"v_add_f32 v{244+r}, v{244+r}, v{G+4+r}")
    A(f"v_cvt_pk_bf16_f32 v{G}, v244, v245\nv_cvt_pk_bf16_f32 v{G+2}, v246, v247")
    unp([248, 249], 240); unp([G, G+2], G+4)
    for r in range(4): A(f"v_add_f32 v{240+r}, v{240+r}, v{G+4+r}")
    A(f"v_cvt_pk_bf16_f32 v{G}, v240, v241\nv_cvt_pk_bf16_f32 v{G+2}, v242, v243")
    srd(20, 56, 2304)
    A(f"""s_mov_b64 exec, 3
    buffer_store_short v{G}, v57, s[20:23], 0 offen
    buffer_store_short_d16_hi v{G}, v57, s[20:23], 0 offen offset:16
    buffer_store_short v{G+2}, v57, s[20:23], 0 offen offset:32
    buffer_store_short_d16_hi v{G+2}, v57, s[20:23], 0 offen offset:48
    s_mov_b64 exec, -1""")
    stamp(6)
    A(f"""s_cmp_lg_u32 s2, 0
    s_cbranch_scc1 L_end
    v_mov_b32 v48, s80
    s_mov_b32 s67, {NONCE}
    s_mov_b64 exec, 1
    buffer_store_dword v48, v61, s[12:15], s67 offen
    s_mov_b64 exec, -1""")
    endp()
    A(f"""L_w6:
    s_cmp_ge_u32 s2, 144
    s_cbranch_scc1 L_end
    v_bfe_u32 v50, v2, 3, 1
    v_mul_u32_u24 v50, 1152, v50
    v_lshl_add_u32 v50, v3, 6, v50
    v_and_b32 v49, 7, v2
    v_lshl_add_u32 v50, v49, 1, v50""")
    for u in range(5): A(f"s_mov_b32 s{81+u}, {H3+1024*u}")
    zero16()
    if seq: A("s_barrier")
    poll(ld4, range(G+3, G+20, 4), 38)
    for u in range(5):
        A(f"v_and_b32 v{G+4*u+3}, 0xffff0000, v{G+4*u+1}\nv_lshlrev_b32 v{G+4*u+2}, 16, v{G+4*u+1}\nv_and_b32 v{G+4*u+1}, 0xffff0000, v{G+4*u}\nv_lshlrev_b32 v{G+4*u}, 16, v{G+4*u}")
    c32 = c8
    def lnsum(first):
        dppred("v_add_f32", [40], c8); swapred("v_add_f32", [40], 41, 16); swapred("v_add_f32", [40], 41, 32)
    A(f"v_add_f32 v40, v{G}, v{G+1}")
    for j in range(2, 20): A(f"v_add_f32 v40, v40, v{G+j}")
    lnsum(1)
    A(f"v_mul_f32 v40, {f2u(1/576)}, v40")
    for j in range(16): A(f"v_sub_f32 v{G+j}, v{G+j}, v40")
    A("s_mov_b32 exec_hi, 0")
    for j in range(16, 20): A(f"v_sub_f32 v{G+j}, v{G+j}, v40")
    A(f"s_mov_b32 exec_hi, -1\nv_mul_f32 v40, v{G}, v{G}")
    for j in range(1, 20): A(f"v_fmac_f32 v40, v{G+j}, v{G+j}")
    lnsum(0)
    A(f"v_mov_b32 v41, {f2u(1e-5)}\nv_fmac_f32 v41, {f2u(1/576)}, v40\nv_rsq_f32 v40, v41\ns_nop 0")
    for j in range(20): A(f"v_mul_f32 v{G+j}, v{G+j}, v40")
    for j in range(10): A(f"v_cvt_pk_bf16_f32 v{G+j}, v{G+2*j}, v{G+2*j+1}")
    for j in range(10):
        if j == 8: A("s_mov_b32 exec_hi, 0")
        o = L_XN + 256*(j//2) + 32*(j % 2)
        A(f"ds_write_b16 v50, v{G+j} offset:{o}\nds_write_b16_d16_hi v50, v{G+j} offset:{o+16}")
    A("s_mov_b32 exec_hi, -1\ns_waitcnt lgkmcnt(0)\ns_barrier")
    stamp(4)
    A("L_end:")
    if stamps:
        A(f"""s_cmp_eq_u32 s93, 0
        s_cbranch_scc1 L_exit
        v_lshlrev_b32 v62, 2, v1
        s_lshl_b32 s92, s2, 6
        s_add_u32 s92, s92, {STAMP}
        s_mov_b32 exec_lo, s93
        s_mov_b32 exec_hi, 0
        buffer_store_dword v63, v62, s[12:15], s92 offen""")
    A("L_exit:\ns_endpgm")
    A(f'''.section .rodata,"a"
    .p2align 6
    .amdhsa_kernel {NAME}_kernel
    .amdhsa_next_free_vgpr 256
    .amdhsa_next_free_sgpr 102
    .amdhsa_accum_offset 256
    .amdhsa_group_segment_fixed_size 0
    .amdhsa_kernarg_size 104
    .amdhsa_user_sgpr_count 2
    .amdhsa_user_sgpr_kernarg_segment_ptr 1
    .amdhsa_system_sgpr_workgroup_id_x 1
    .end_amdhsa_kernel''')
    if warm: L = add_pads(L, "L_tail:", "L_end:", warm)
    if ldpol: L = [(x.replace(" sc1", ["", " sc0 sc1", " sc1 nt", " sc0 sc1 nt"][ldpol]) if x.startswith("buffer_load") else x) for x in L]
    if stpol: L = [(x.replace(" sc1", ["", " sc0 sc1", " sc1 nt", " sc0 sc1 nt"][stpol]) if x.startswith("buffer_store") else x) for x in L]
    return "\n".join(L) + "\n"

if __name__ == "__main__":
    out = sys.argv[1]; kw = {}
    for a in sys.argv[2:]:
        k, v = a.split("="); kw[k] = int(v)
    ref = open("cdna_kernels/" + NAME + ".s.ref").read().split("\n") if not kw.get("stamps") else []
    hdr = "\n".join(l for l in ref if l.startswith(";") and "@launch" not in l)
    open(out, "w").write(gen(header=hdr, **kw))
```

```python
import sys, struct
NAME = "sequential_preLN__gqa_block_cached__dense_activation_gelu__decode"
QBOX, NONCE, H3, H1, H2, H4, STAMP = 0x0, 0x40000, 0x48000, 0x80000, 0x100000, 0x600000, 0x10000000
L_XN, L_Q, L_CNT, L_ACC, L_ML, L_W1 = 0x0, 0xA00, 0xC00, 0x1000, 0x3000, 0x4000
def f2u(x): return "0x%08x" % struct.unpack("<I", struct.pack("<f", x))[0]
SPIN = 1 << 18
CNTB = 0x50000

def add_pads(L, start, end, spacing):
    import subprocess, re, os
    open("_p.s", "w").write("\n".join(x for x in L if "L_pad0" not in x) + "\n")
    subprocess.run(["clang", "-x", "assembler", "-target", "amdgcn-amd-amdhsa", "-mcpu=gfx950", "-c", "_p.s", "-o", "_p.o"], check=True)
    d = subprocess.run(["llvm-objdump", "-d", "_p.o"], capture_output=True, text=True).stdout
    sizes = [4*len(m.group(1).split()) for m in re.finditer(r"// [0-9A-F]+: ((?:[0-9A-F]{8} ?)+)", d)]
    isins = lambda x: x and not x.startswith((";", ".")) and not x.endswith(":")
    out = []; k = 0; inreg = False; dist = 0; n = 0
    for x in L:
        if x == start:
            inreg = True; out.append(x); out.append("PAD"); dist = 4; continue
        if x == end and inreg:
            inreg = False; out.append("PAD")
        if isins(x) and "L_pad0" not in x:
            sz = sizes[k]; k += 1
            if inreg:
                if dist + sz > spacing: out.append("PAD"); dist = 4
                dist += sz
        out.append(x)
    tot = out.count("PAD"); res = []
    for x in out:
        if x == "PAD":
            res.append(f"L_pad{n}:"); n += 1
            res.append(f"s_cbranch_execz L_pad{n}" if n < tot else "s_cbranch_execz L_warmret")
        else: res.append(x)
    sys.stderr.write(f"pads {tot}\n")
    return res

def gen(pt=1, bsl=0, bal=0, bg=2, lead=12, bd=3, mid=0, dis=0, nw=0, mp1=-1, mp2=-1, NBUF=6, stamps=False, wlate=0, pace=-1, seq=0, slp=0, qslp=0, noclr=0, stpol=0, nopf=0, warm=0, nowt=0, exact=0, clr0=0, pair=0, ldpol=0, dyn=0, header=""):
    L = []
    def A(s): L.extend(x.strip() for x in s.strip().split("\n"))
    nlab = [0]
    def lab(p):
        nlab[0] += 1; return f"L_{p}{nlab[0]}"
    def srd(d, base, size):
        A(f"s_mov_b32 s{d}, s{base}\ns_and_b32 s{d+1}, s{base+1}, 0xffff\ns_mov_b32 s{d+2}, {size}\ns_mov_b32 s{d+3}, 0x20000")
    def stamp(i):
        if not stamps: return
        A(f"""s_memrealtime s[90:91]
        s_waitcnt lgkmcnt(0)
        v_writelane_b32 v63, s90, {i}
        s_bitset1_b32 s93, {i}""")
    def endp():
        if stamps: A("s_branch L_end")
        else: A("s_endpgm")
    def stamp0(i):
        if not stamps: return
        l = lab("st"); A(f"s_cmp_lg_u32 s3, 0\ns_cbranch_scc1 {l}"); stamp(i); A(f"{l}:")
    def dpp(op, d, a, b, ctl): A(f"{op}_dpp v{d}, v{a}, v{b} {ctl} row_mask:0xf bank_mask:0xf")
    def swapred(op, regs, tmp, which):
        for i, r in enumerate(regs): A(f"v_mov_b32 v{tmp+i}, v{r}")
        A("s_nop 1")
        for i, r in enumerate(regs): A(f"v_permlane{which}_swap_b32 v{r}, v{tmp+i}")
        for i, r in enumerate(regs): A(f"{op} v{r}, v{r}, v{tmp+i}")
    def dppred(op, regs, ctls):
        for c in ctls:
            if len(regs) < 3: A("s_nop 1")
            for r in regs: dpp(op, r, r, r, c)
    def anysent(regs, t):
        regs = list(regs)
        A(f"v_xor_b32 v{t}, s80, v{regs[0]}")
        for r in regs[1:]: A(f"v_xor_b32 v{t+1}, s80, v{r}\nv_or_b32 v{t}, v{t}, v{t+1}")
        A(f"v_cmp_ne_u32 vcc, 0, v{t}")
    def poll(loads, regs, t):
        l0, l1 = lab("poll"), lab("done")
        A(f"s_mov_b32 s70, {SPIN}\n{l0}:")
        loads()
        A("s_waitcnt vmcnt(0)")
        anysent(regs, t)
        A(f"s_cbranch_vccz {l1}")
        if slp: A(f"s_sleep {slp}")
        A(f"s_sub_u32 s70, s70, 1\ns_cbranch_scc0 {l0}\n{l1}:")
    def pack24(d):
        A("s_mov_b32 s68, 0x07060501\ns_mov_b32 s69, 0x07060502\ns_mov_b32 s79, 0x07060503")
        for r, sg in enumerate((68, 69, 79)): A(f"v_perm_b32 v{d+r}, v{d+r}, v{d+3}, s{sg}")
    def unpack24(d):
        A(f"v_perm_b32 v{d+3}, v{d+1}, v{d}, s68\nv_perm_b32 v{d+3}, v{d+2}, v{d+3}, s69")
    SELU = "s_mov_b32 s68, 0x0c0c0400\ns_mov_b32 s69, 0x0401000c"
    def bmask(dst, src):
        for r in range(4): A(f"v_and_b32 v{dst+r}, v{6+r}, v{src}")
    def MF(d, a, b, c=None):
        cs = f"v[{d}:{d+3}]" if c is None else c
        A(f"v_mfma_f32_16x16x32_bf16 v[{d}:{d+3}], v[{a}:{a+3}], v[{b}:{b+3}], {cs}")
    def lnstats(vals, t):
        A(f"v_add_f32 v{t}, v{vals[0]}, v{vals[1]}")
        for v in vals[2:]: A(f"v_add_f32 v{t}, v{t}, v{v}")
        dppred("v_add_f32", [t], ["row_ror:8", "row_ror:4", "row_ror:2", "row_ror:1"])
        swapred("v_add_f32", [t], t+1, 16)
        A(f"v_mul_f32 v{t}, {f2u(1/576)}, v{t}")
        for v in vals: A(f"v_sub_f32 v{v}, v{v}, v{t}")
        A(f"v_mul_f32 v{t}, v{vals[0]}, v{vals[0]}")
        for v in vals[1:]: A(f"v_fmac_f32 v{t}, v{v}, v{v}")
        dppred("v_add_f32", [t], ["row_ror:8", "row_ror:4", "row_ror:2", "row_ror:1"])
        swapred("v_add_f32", [t], t+1, 16)
        A(f"v_mov_b32 v{t+1}, {f2u(1e-5)}\nv_fmac_f32 v{t+1}, {f2u(1/576)}, v{t}\nv_rsq_f32 v{t}, v{t+1}\ns_nop 0")
        for v in vals: A(f"v_mul_f32 v{v}, v{v}, v{t}")
    SL = 64
    NT = 256 - bal
    NW = 7 if bal else 8
    L_TAB = 0x8000
    def tile_loads(k, sreg):
        b = SL + 32*k
        for t in range(4): A(f"buffer_load_dwordx4 v[{b+4*t}:{b+4*t+3}], v4, s[4:7], s{sreg} offen offset:{64*t} nt")
        for t in range(4): A(f"buffer_load_dwordx4 v[{b+16+4*t}:{b+16+4*t+3}], v5, s[8:11], s{sreg} offen offset:{256*t} nt")
    def prefetch(paced=False):
        A("s_lshl_b32 s67, s3, 12\ns_add_u32 s67, s67, s66")
        if dyn: A("s_lshl_b32 s68, s64, 15\ns_add_u32 s67, s67, s68")
        for k in range(NBUF):
            tile_loads(k, 67)
            if k + 1 < NBUF:
                A("s_add_u32 s67, s67, %d" % (0x40000 if dyn else NW*0x1000))
                if paced and pace >= 0: A(f"s_waitcnt vmcnt({pace})")
    WO, W1, W2, B1 = 64, 80, 104, 136
    NOMLP = "s_cmp_lt_u32 s2, 112" if dis else "s_cmp_ge_u32 s2, 144"
    CI = "s96" if dis else "s2"
    def load_wo():
        l = lab("wo"); A(f"s_cmp_gt_u32 s3, 4\ns_cbranch_scc1 {l}")
        srd(20, 44, 4096*1152)
        A(f"""s_lshl_b32 s67, s62, 8
        s_lshl_b32 s68, s63, 7
        s_add_u32 s67, s67, s68
        s_add_u32 s67, s67, s64
        s_mul_i32 s67, s67, 1152
        s_lshl_b32 s68, s3, 8
        s_add_u32 s67, s67, s68
        v_mul_u32_u24 v48, {32*1152}, v3
        v_lshl_add_u32 v48, v2, 4, v48""")
        for t in range(4):
            A(f"buffer_load_dwordx4 v[{WO+4*t}:{WO+4*t+3}], v48, s[20:23], s67 offen nt")
            if t < 3: A("s_add_u32 s67, s67, 9216")
        A(f"{l}:")
    def load_mlp(do1=True, do2=True, paced=False):
        l = lab("mlp"); l2 = lab("mlp")
        A(f"{NOMLP}\ns_cbranch_scc1 {l}\ns_cmp_gt_u32 s3, 5\ns_cbranch_scc1 {l}")
        if do1: load_w1(paced)
        if do2: load_w2(l, paced)
        A(f"{l}:")
    def load_w1(paced):
        srd(24, 48, 576*9216)
        A(f"""s_mul_i32 s67, s3, {96*9216}
        s_lshl_b32 s68, s89, 6
        s_add_u32 s67, s67, s68
        v_mul_u32_u24 v49, {8*9216}, v3
        v_lshl_add_u32 v49, v2, 2, v49""")
        for i in range(24):
            A(f"buffer_load_dword v{W1+i}, v49, s[24:27], s67 offen {'' if pair == 1 else 'nt'}")
            if i < 23: A(f"s_add_u32 s67, s67, {9216 if i % 8 != 7 else 25*9216}")
            if paced and mp1 >= 0 and i >= mp1: A(f"s_waitcnt vmcnt({mp1})")
    def load_w2(l, paced):
        A(f"s_cmp_gt_u32 s3, 4\ns_cbranch_scc1 {l}")
        srd(28, 52, 4608*1152)
        A(f"""s_mul_i32 s67, s89, {32*1152}
        s_lshl_b32 s68, s3, 8
        s_add_u32 s67, s67, s68
        v_mul_u32_u24 v50, {8*1152}, v3
        v_lshl_add_u32 v50, v2, 4, v50""")
        for t in range(8):
            A(f"buffer_load_dwordx4 v[{W2+4*t}:{W2+4*t+3}], v50, s[28:31], s67 offen offset:{1152*(t%4)} nt")
            if t == 3: A("s_add_u32 s67, s67, 4608")
            if paced and mp2 >= 0: A(f"s_waitcnt vmcnt({mp2})")
        srd(24, 50, 4608*2)
        A(f"""v_and_b32 v51, 7, v2
        v_lshl_add_u32 v51, v3, 3, v51
        v_lshlrev_b32 v51, 1, v51
        s_lshl_b32 s67, s89, 6
        buffer_load_ushort v{B1}, v51, s[24:27], s67 offen""")
    def quad_store(d, box, pi="s2"):
        A(f"""s_lshl_b32 s67, s3, 18
        s_lshl_b32 s68, {pi}, 5
        s_add_u32 s67, s67, s68
        s_add_u32 s67, s67, {box}
        s_nop 0""")
        pack24(d)
        A(f"""v_mov_b32 v{d+3}, s80
        s_cmp_eq_u32 s3, 4
        s_cselect_b32 exec_hi, 0, -1
        buffer_store_dwordx4 v[{d}:{d+3}], v52, s[12:15], s67 offen sc1
        s_mov_b32 exec_hi, -1""")
    def quad_reduce(d):
        dppred("v_add_f32", [d, d+1, d+2, d+3], ["quad_perm:[2,3,0,1]", "row_ror:4", "row_ror:8"])
        swapred("v_add_f32", [d, d+1, d+2, d+3], 44, 16)
        swapred("v_add_f32", [d, d+1, d+2, d+3], 44, 32)
    def rbf(r, t=None):
        A(f"v_cvt_pk_bf16_f32 v{r}, v{r}, v{r}\nv_and_b32 v{r}, 0xffff0000, v{r}")

    A(header)
    A("; @launch grid=(256,1,1) block=(512,1,1) lds=90000")
    A('.amdgcn_target "amdgcn-amd-amdhsa--gfx950"\n.text')
    A(f".globl {NAME}_kernel\n.p2align 8\n.type {NAME}_kernel,@function\n{NAME}_kernel:")
    A(f"""s_cmp_ge_u32 s2, 256
    s_cbranch_scc1 L_exit
    s_mov_b32 s93, 0
    s_load_dwordx16 s[36:51], s[0:1], 0
    s_load_dwordx8 s[52:59], s[0:1], 64
    s_load_dwordx2 s[60:61], s[0:1], 96
    v_lshrrev_b32 v48, 6, v0
    v_and_b32 v1, 63, v0
    v_readfirstlane_b32 s3, v48
    v_and_b32 v2, 15, v1
    v_lshrrev_b32 v3, 4, v1
    v_lshlrev_b32 v4, 8, v2
    v_lshl_add_u32 v4, v3, 4, v4
    v_lshlrev_b32 v5, 4, v2
    v_lshl_add_u32 v5, v3, 10, v5
    v_mov_b32 v57, 0
    v_lshlrev_b32 v61, 4, v1
    s_lshr_b32 s62, s2, 3
    s_and_b32 s62, s62, 15
    s_lshr_b32 s63, s2, 7
    s_and_b32 s64, s2, 7
    s_lshl_b32 s65, s63, 3
    s_add_u32 s65, s65, s64
    s_lshl_b32 s66, s2, 20
    s_andn2_b32 s89, s2, 15
    s_lshl_b32 s67, s64, 1
    s_add_u32 s89, s89, s67
    s_bfe_u32 s67, s2, 0x10003
    s_add_u32 s89, s89, s67
    {"" if pair else "s_mov_b32 s89, s2"}
    s_mov_b32 s76, {f2u(1.4426950408889634 * 128**-0.5)}
    s_mov_b32 s77, {f2u(-1.4426950408889634 * 128**-0.5)}
    s_waitcnt lgkmcnt(0)
    s_load_dword s80, s[60:61], {NONCE}""")
    if dyn: A(f"""s_lshr_b32 s94, s2, 3
    s_lshl_b32 s66, s94, 23
    s_mul_i32 s94, s94, {dyn}
    s_add_u32 s94, s94, {CNTB}
    s_load_dword s95, s[60:61], s94""")
    if bal: A(f"s_andn2_b32 s66, s2, 7\ns_lshl_b32 s66, s66, 20\ns_mul_i32 s67, s64, {NT*4096}\ns_add_u32 s66, s66, s67")
    if dis: A("s_sub_u32 s89, s89, 112\ns_sub_u32 s97, s2, 112")
    srd(4, 38, 0x10000000); srd(8, 40, 0x10000000); srd(12, 60, 0x40000000)
    A("s_cmp_eq_u32 s3, 0\ns_cbranch_scc1 L_qphase")
    if nopf and not nw: A("s_waitcnt lgkmcnt(0)")
    if nopf: A("s_barrier")
    if bal: A("s_cmp_eq_u32 s3, 7\ns_cbranch_scc1 L_masks")
    prefetch(True)
    A("L_masks:\ns_waitcnt lgkmcnt(0)\ns_add_u32 s80, s80, 0x9e3779b9")
    A("""v_and_b32 v48, 1, v2
    v_lshlrev_b32 v48, 4, v48
    v_mov_b32 v49, 0xffff
    v_lshlrev_b32 v49, v48, v49
    v_bfe_u32 v48, v2, 1, 2""")
    for r in range(4): A(f"v_cmp_eq_u32 vcc, {r}, v48\ns_nop 1\nv_cndmask_b32 v{6+r}, 0, v49, vcc")
    A("s_cmp_eq_u32 s3, 0\ns_cbranch_scc1 L_qphase2\ns_barrier\ns_branch L_main")
    A("L_qphase:")
    stamp(0)
    srd(20, 36, 2304); srd(24, 42, 576*8192)
    XQ = 200
    A(f"""v_lshrrev_b32 v48, 5, v1
    v_and_b32 v49, 31, v1
    v_mul_u32_u24 v50, 1152, v48
    v_lshl_add_u32 v51, v49, 4, v50
    v_lshl_add_u32 v50, v49, 2, v50
    buffer_load_dwordx4 v[{XQ}:{XQ+3}], v51, s[20:23], 0 offen
    buffer_load_dwordx4 v[{XQ+4}:{XQ+7}], v51, s[20:23], 0 offen offset:512
    buffer_load_dword v{XQ+8}, v50, s[20:23], 0 offen offset:1024
    s_lshl_b32 s67, s62, 1
    s_add_u32 s67, s67, s63
    s_lshl_b32 s67, s67, 8
    s_mul_i32 s68, s64, {72*8192}
    s_add_u32 s67, s67, s68
    v_mul_u32_u24 v52, {18*8192}, v3
    v_lshl_add_u32 v52, v2, 4, v52""")
    for t in range(18):
        A(f"buffer_load_dwordx4 v[{SL+4*t}:{SL+4*t+3}], v52, s[24:27], s67 offen nt")
        if t < 17: A("s_add_u32 s67, s67, 8192")
    if nopf == 2: A("s_barrier")
    if bal:
        A(f"""s_cmp_lg_u32 s64, 0
        s_cbranch_scc1 L_cz
        s_lshl_b32 s67, s2, 4
        s_add_u32 s67, s67, {CNTB}
        v_mov_b32 v53, 0
        s_mov_b64 exec, 1
        buffer_store_dword v53, v53, s[12:15], s67 offen sc1
        s_mov_b64 exec, -1
        L_cz:""")
    stamp(11)
    A("""s_waitcnt vmcnt(18)
    s_branch L_masks
    L_qphase2:""")
    XF = 210
    for i in range(9): A(f"v_lshlrev_b32 v{XF+2*i}, 16, v{XQ+i}\nv_and_b32 v{XF+2*i+1}, 0xffff0000, v{XQ+i}")
    lnstats(list(range(XF, XF+18)), 40)
    for i in range(9): A(f"v_cvt_pk_bf16_f32 v{XQ+i}, v{XF+2*i}, v{XF+2*i+1}")
    A(f"""ds_write_b128 v51, v[{XQ}:{XQ+3}] offset:{L_XN}
    ds_write_b128 v51, v[{XQ+4}:{XQ+7}] offset:{L_XN+512}
    ds_write_b32 v50, v{XQ+8} offset:{L_XN+1024}
    v_lshrrev_b32 v48, 3, v2
    v_mul_u32_u24 v48, 1152, v48
    v_mul_u32_u24 v49, 36, v3
    s_mul_i32 s67, s64, 144
    v_add3_u32 v48, v48, v49, s67
    v_mov_b32 v49, {NW*NBUF}
    v_mov_b32 v54, 0
    ds_write_b32 v54, v49 offset:{L_CNT}
    v_mov_b32 v56, 0
    v_mov_b32 v57, 0
    v_mov_b32 v58, 0
    v_mov_b32 v59, 0
    {f"ds_write_b128 v61, v[56:59] offset:{L_TAB}" if bal else ""}
    s_waitcnt lgkmcnt(0)""")
    stamp(13)
    for i in range(9): A(f"ds_read_b32 v{XQ+i}, v48 offset:{L_XN+4*i}")
    A("s_mov_b32 s68, 0x01000100\ns_mov_b32 s69, 0x03020302\ns_waitcnt vmcnt(0) lgkmcnt(0)")
    stamp(8)
    if nopf == 1: A("s_barrier")
    for t in range(18):
        bs = 40 + 4*(t % 2)
        A(f"v_perm_b32 v55, v{XQ+t//2}, v{XQ+t//2}, s{68+t%2}")
        bmask(bs, 55)
        if t > 0: MF(26, SL+4*(t-1), 40+4*((t-1) % 2), "0" if t == 1 else None)
    A("s_nop 1"); MF(26, SL+68, 44)
    A(f"""v_lshrrev_b32 v48, 3, v2
    v_lshlrev_b32 v48, 13, v48
    v_and_b32 v49, 7, v2
    v_lshl_add_u32 v49, v3, 3, v49
    v_lshl_add_u32 v48, v49, 4, v48
    s_lshl_b32 s67, s62, 14
    s_lshl_b32 s68, s63, 12
    s_add_u32 s67, s67, s68
    s_lshl_b32 s68, s64, 9
    s_add_u32 s67, s67, s68
    s_nop 0""")
    pack24(26)
    A("v_mov_b32 v29, s80\nbuffer_store_dwordx4 v[26:29], v48, s[12:15], s67 offen sc1")
    stamp(9)
    A(f"""
    v_lshrrev_b32 v48, 5, v1
    v_and_b32 v49, 31, v1
    v_lshlrev_b32 v50, 12, v48
    v_lshl_add_u32 v50, v49, 4, v50
    s_lshl_b32 s67, s62, 14
    s_lshl_b32 s68, s63, 13
    s_add_u32 s67, s67, s68""")
    A(f"""v_lshrrev_b32 v51, 3, v49
    v_lshlrev_b32 v51, 6, v51
    v_and_b32 v49, 7, v49
    v_lshl_add_u32 v51, v49, 1, v51
    v_lshl_add_u32 v51, v48, 8, v51
    {SELU}
    s_mov_b32 s70, {SPIN}
    L_qpoll:""")
    for u in range(8): A(f"buffer_load_dwordx4 v[{SL+4*u}:{SL+4*u+3}], v50, s[12:15], s67 offen offset:{512*u} sc1")
    A(f"s_waitcnt vmcnt(0)\nv_xor_b32 v38, s80, v{SL+3}")
    for u in range(1, 8): A(f"v_xor_b32 v39, s80, v{SL+4*u+3}\nv_or_b32 v38, v38, v39")
    A("v_cmp_ne_u32 vcc, 0, v38\ns_cbranch_vccz L_qgot\ns_sub_u32 s70, s70, 1\ns_cbranch_scc0 L_qpoll\nL_qgot:")
    stamp(10)
    for u in range(8): unpack24(SL+4*u)
    for u in range(1, 8):
        for r in range(4): A(f"v_add_f32 v{SL+r}, v{SL+r}, v{SL+4*u+r}")
    for r in range(4): A(f"v_cvt_pk_bf16_f32 v{SL+r}, v{SL+r}, v{SL+r}")
    for r in range(4): A(f"ds_write_b16 v51, v{SL+r} offset:{L_Q+16*r}")
    A("s_waitcnt lgkmcnt(0)\ns_barrier")
    stamp(1)
    prefetch()
    A(f"""L_main:
    v_lshrrev_b32 v48, 3, v2
    v_lshlrev_b32 v48, 8, v48
    v_lshl_add_u32 v48, v3, 4, v48""")
    for t in range(4): A(f"ds_read_b128 v[{10+4*t}:{13+4*t}], v48 offset:{L_Q+64*t}")
    A(f"""v_mov_b32 v26, 0
    v_mov_b32 v27, 0
    v_mov_b32 v28, 0
    v_mov_b32 v29, 0
    v_mov_b32 v30, 0xff800000
    v_mov_b32 v31, 0
    v_mov_b32 v52, {L_CNT}
    v_mov_b32 v55, 1
    s_mov_b32 s71, {NBUF}
    s_waitcnt lgkmcnt(0)""")
    if warm: A("s_cmp_lg_u32 s3, 7\ns_cbranch_scc1 L_loop\ns_mov_b64 exec, 0\ns_branch L_pad0\nL_warmret:\ns_mov_b64 exec, -1")
    if dyn: A(f"""s_sub_u32 s95, s95, {64*(NBUF+1)}
    s_lshl_b32 s67, s64, 3
    s_add_u32 s67, s67, s3
    s_add_u32 s67, s67, {64*NBUF}
    s_add_u32 s67, s67, s95
    v_mov_b32 v54, s67
    v_mov_b32 v52, 0
    s_waitcnt vmcnt({8*(NBUF-1)})""")
    if bal: A("s_cmp_eq_u32 s3, 7\ns_cbranch_scc1 L_sch")
    A("L_loop:")
    for k in range(NBUF):
        b = SL + 32*k
        A(f"s_waitcnt vmcnt({(9 if dyn else 8)*(NBUF-1)})")
        for t in range(4): MF(32, b+4*t, 10+4*t, "0" if t == 0 else None)
        A("s_nop 7" if dyn else "s_mov_b64 exec, 1\nds_add_rtn_u32 v54, v52, v55\ns_mov_b64 exec, -1\ns_nop 4")
        A("""v_max3_f32 v36, v32, v33, v34
        v_max_f32 v36, v36, v35""")
        swapred("v_max_f32", [36], 37, 16)
        swapred("v_max_f32", [36], 37, 32)
        A("""v_max_f32 v36, v36, v30
        v_mul_f32 v37, s77, v36
        v_fma_f32 v38, v30, s76, v37
        v_fma_f32 v32, v32, s76, v37
        v_exp_f32 v38, v38
        v_exp_f32 v32, v32
        v_fma_f32 v33, v33, s76, v37
        v_fma_f32 v34, v34, s76, v37
        v_fma_f32 v35, v35, s76, v37
        v_mov_b32 v30, v36
        v_cvt_pk_bf16_f32 v39, v32, v32
        v_exp_f32 v33, v33
        v_exp_f32 v34, v34
        v_exp_f32 v35, v35
        v_mul_f32 v26, v26, v38
        v_mul_f32 v27, v27, v38
        v_mul_f32 v28, v28, v38
        v_mul_f32 v29, v29, v38
        v_fma_f32 v31, v31, v38, v32""")
        bmask(40, 39)
        for r in range(1, 4):
            A(f"v_cvt_pk_bf16_f32 v39, v{32+r}, v{32+r}\nv_add_f32 v31, v31, v{32+r}")
            MF(26, b+16+4*(r-1), 40+4*((r-1) % 2))
            bmask(40+4*(r % 2), 39)
        A("s_waitcnt %s\nv_readfirstlane_b32 s67, v54" % ("vmcnt(8)" if dyn else "lgkmcnt(0)"))
        MF(26, b+28, 44)
        ls, ln = lab("skip"), lab("next")
        if stamps and mid:
            for iv, si in ((128, 12), (224, 14)):
                lm = lab("mid"); A(f"s_cmp_lg_u32 s67, {iv}\ns_cbranch_scc1 {lm}"); stamp(si); A(f"{lm}:")
        if dyn:
            assert NBUF == 2
            A(f"""s_sub_u32 s67, s67, s95
            s_cmp_ge_u32 s67, 2048
            s_cbranch_scc1 {ls}
            v_mov_b32 v54, 1
            s_lshl_b32 s67, s67, 12
            s_add_u32 s67, s67, s66
            s_mov_b64 exec, 1
            buffer_atomic_add v54, v52, s[12:15], s94 offen sc0 sc1
            s_mov_b64 exec, -1""")
        elif bal:
            lp, lg, lw = lab("pool"), lab("go"), lab("pw")
            A(f"s_cmp_ge_u32 s67, {NT}\ns_cbranch_scc1 {lp}\ns_lshl_b32 s67, s67, 12\ns_add_u32 s67, s67, s66\n{lg}:")
        else: A(f"s_cmp_ge_u32 s67, {NT}\ns_cbranch_scc1 {ls}\ns_lshl_b32 s67, s67, 12\ns_add_u32 s67, s67, s66")
        tile_loads(k, 67)
        A(f"s_branch {ln}" if k + 1 < NBUF else "s_branch L_loop")
        if bal:
            A(f"""{lp}:
            s_sub_u32 s67, s67, {NT}
            s_lshr_b32 s68, s67, {bg}
            s_lshl_b32 s68, s68, 2
            v_mov_b32 v56, s68
            s_and_b32 s67, s67, {(1 << bg) - 1}
            s_lshl_b32 s67, s67, 12
            {lw}:
            ds_read_b32 v57, v56 offset:{L_TAB}
            s_waitcnt lgkmcnt(0)
            v_readfirstlane_b32 s68, v57
            s_cmp_eq_u32 s68, 0
            s_cbranch_scc1 {lw}
            s_add_u32 s67, s67, s68
            s_cmp_lg_u32 s68, 2
            s_cbranch_scc1 {lg}""")
        A(f"{ls}:\ns_sub_u32 s71, s71, 1\ns_cmp_eq_u32 s71, 0\ns_cbranch_scc1 L_tail")
        if not exact: A("buffer_load_dword v56, v53, s[16:19], 0 offen sc1\ns_waitcnt vmcnt(0)")
        else:
            tgt = ln if k + 1 < NBUF else "L_loop"
            for j in range(NBUF-1, 0, -1):
                lj = lab("dr")
                if j > 1: A(f"s_cmp_lg_u32 s71, {j}\ns_cbranch_scc1 {lj}")
                A(f"s_waitcnt vmcnt({8*(j-1)})")
                if j > 1: A(f"s_branch {tgt}\n{lj}:")
        A(f"{ln}:" if k + 1 < NBUF else "s_branch L_loop")
    if bal:
        Gt = 1 << bg
        A(f"""L_sch:
        s_mov_b32 s72, 0
        s_mov_b32 s73, {NT - lead}
        s_andn2_b32 s74, s2, 7
        s_lshl_b32 s75, s74, 4
        s_add_u32 s75, s75, {CNTB}
        s_lshl_b32 s74, s74, 20
        s_add_u32 s74, s74, {8*NT*4096}
        v_mov_b32 v53, 0
        {"buffer_load_dword v58, v53, s[4:7], s74 offen" if pt else ""}
        {"buffer_load_dword v59, v53, s[8:11], s74 offen" if pt else ""}
        v_lshlrev_b32 v56, 2, v1
        L_sch0:""")
        for k in range(bd):
            lw, lq = lab("sw"), lab("sq")
            A(f"""{lw}:
            {f"s_sleep {bsl}" if bsl else ""}
            ds_read_b32 v57, v52
            s_waitcnt lgkmcnt(0)
            v_readfirstlane_b32 s67, v57
            s_cmp_lt_u32 s67, s73
            s_cbranch_scc1 {lw}
            v_mov_b32 v{70+k}, 1
            s_mov_b64 exec, 1
            buffer_atomic_add v{70+k}, v53, s[12:15], s75 offen sc0 sc1
            s_mov_b64 exec, -1
            s_add_u32 s73, s73, {Gt}
            s_add_u32 s72, s72, 1
            s_cmp_lt_u32 s72, {bd}
            s_cbranch_scc1 {lq}
            s_waitcnt vmcnt({bd-1})
            v_readfirstlane_b32 s67, v{70+(k+1) % bd}
            s_cmp_ge_u32 s67, {8*bal//Gt}
            s_cbranch_scc1 L_schend
            s_lshl_b32 s67, s67, {12+bg}
            s_add_u32 s67, s67, s74
            v_mov_b32 v57, s67
            s_mov_b64 exec, 1
            ds_write_b32 v56, v57 offset:{L_TAB}
            s_mov_b64 exec, -1
            v_add_u32 v56, 4, v56
            {lq}:""")
        A(f"""s_branch L_sch0
        L_schend:
        v_mov_b32 v57, 2
        ds_write_b32 v56, v57 offset:{L_TAB}
        s_waitcnt vmcnt(0)""")
    A("L_tail:")
    if not nowt: load_wo()
    if wlate == 0 and not nowt: load_mlp()
    if wlate == 2: load_mlp(True, False)
    if wlate == 3: load_mlp(False, True)
    swapred("v_add_f32", [31], 37, 16)
    swapred("v_add_f32", [31], 37, 32)
    A(f"""v_mul_f32 v30, s76, v30
    s_lshl_b32 s67, s3, 9
    v_lshl_add_u32 v54, v1, 3, s67
    v_lshlrev_b32 v55, 1, v54
    ds_write_b64 v54, v[30:31] offset:{L_ML}
    ds_write_b128 v55, v[26:29] offset:{L_ACC}
    v_lshrrev_b32 v52, 1, v1
    v_lshlrev_b32 v52, 13, v52
    v_and_b32 v53, 1, v1
    v_lshl_add_u32 v52, v53, 4, v52
    s_waitcnt lgkmcnt(0)
    s_barrier
    s_cmp_eq_u32 s3, 5
    s_cbranch_scc1 L_w5
    s_cmp_eq_u32 s3, 6
    s_cbranch_scc1 L_w6
    s_cmp_eq_u32 s3, 7
    s_cbranch_scc1 {'L_w7' if dis else 'L_end'}
    s_cmp_lg_u32 s3, 0
    s_cbranch_scc1 L_h1""")
    stamp(2)
    CA, CM = 160, 192
    for w in range(8): A(f"ds_read_b64 v[{CM+2*w}:{CM+2*w+1}], v54 offset:{L_ML+512*w}")
    for w in range(8): A(f"ds_read_b128 v[{CA+4*w}:{CA+4*w+3}], v55 offset:{L_ACC+1024*w}")
    A(f"s_waitcnt lgkmcnt(8)\nv_max3_f32 v30, v{CM}, v{CM+2}, v{CM+4}\nv_max3_f32 v30, v30, v{CM+6}, v{CM+8}\nv_max3_f32 v30, v30, v{CM+10}, v{CM+12}\nv_max_f32 v30, v30, v{CM+14}")
    for w in range(8): A(f"v_sub_f32 v{CM+2*w}, v{CM+2*w}, v30")
    for w in range(8): A(f"v_exp_f32 v{CM+2*w}, v{CM+2*w}")
    A(f"s_waitcnt lgkmcnt(0)\nv_mul_f32 v31, v{CM}, v{CM+1}")
    for r in range(4): A(f"v_mul_f32 v{26+r}, v{CM}, v{CA+r}")
    for w in range(1, 8):
        A(f"v_fmac_f32 v31, v{CM+2*w}, v{CM+2*w+1}")
        for r in range(4): A(f"v_fmac_f32 v{26+r}, v{CM+2*w}, v{CA+4*w+r}")
    A(f"""v_rcp_f32 v32, v31
    v_log_f32 v31, v31
    v_lshlrev_b32 v54, 10, v2
    v_lshl_add_u32 v54, v3, 4, v54
    s_lshl_b32 s67, s62, 14
    s_lshl_b32 s68, s65, 6
    s_add_u32 s67, s67, s68
    s_add_u32 s67, s67, {H1}""")
    for r in range(4): A(f"v_mul_f32 v{26+r}, v{26+r}, v32")
    A(f"""v_cvt_pk_bf16_f32 v26, v26, v27
    v_cvt_pk_bf16_f32 v27, v28, v29
    v_add_f32 v28, v30, v31
    v_mov_b32 v29, s80
    buffer_store_dwordx4 v[26:29], v54, s[12:15], s67 offen sc1
    L_h1:
    v_lshlrev_b32 v54, 6, v2
    v_lshl_add_u32 v54, v3, 4, v54
    s_lshl_b32 s67, s62, 4
    s_add_u32 s67, s67, s65
    s_lshl_b32 s67, s67, 10
    s_add_u32 s67, s67, {H1}""")
    poll(lambda: A("buffer_load_dwordx4 v[32:35], v54, s[12:15], s67 offen sc1"), [35], 38)
    A("""v_mov_b32 v38, v34
    v_mov_b32 v37, v34
    v_and_b32 v35, 0xffff0000, v33
    v_lshlrev_b32 v34, 16, v33
    v_and_b32 v33, 0xffff0000, v32
    v_lshlrev_b32 v32, 16, v32""")
    c8 = ["quad_perm:[1,0,3,2]", "quad_perm:[2,3,0,1]", "row_half_mirror"]
    dppred("v_max_f32", [38], c8)
    A("v_sub_f32 v37, v37, v38\nv_exp_f32 v37, v37\ns_nop 0")
    for r in range(4): A(f"v_mul_f32 v{32+r}, v{32+r}, v37")
    dppred("v_add_f32", [37, 32, 33, 34, 35], c8)
    A("v_rcp_f32 v37, v37\ns_nop 0")
    for r in range(4): A(f"v_mul_f32 v{32+r}, v{32+r}, v37")
    for t in range(4):
        A(f"v_cvt_pk_bf16_f32 v39, v{32+t}, v{32+t}")
        bmask(40+4*(t % 2), 39)
        if t > 0: MF(26, WO+4*(t-1), 40+4*((t-1) % 2), "0" if t == 1 else None)
    A("s_nop 1"); MF(26, WO+12, 44)
    A("s_nop 1")
    quad_store(26, H2)
    stamp0(7)
    if dis: A("s_barrier\ns_cmp_lt_u32 s2, 112\ns_cbranch_scc1 L_end\nL_mlp0:")
    else:
        A("s_cmp_ge_u32 s2, 144\ns_cbranch_scc1 L_end")
        if seq: A("s_barrier")
    if wlate == 1: load_mlp(True, True, True)
    if wlate == 2: load_mlp(False, True, True)
    if wlate == 3: load_mlp(True, False, True)
    A("L_mlp:\ns_mov_b32 s68, 0x05040100\ns_mov_b32 s69, 0x07060302\ns_waitcnt vmcnt(0)")
    FE = 160
    for i in range(3):
        for a in range(4):
            A(f"v_perm_b32 v{FE+8*i+a}, v{W1+8*i+2*a+1}, v{W1+8*i+2*a}, s68\nv_perm_b32 v{FE+8*i+4+a}, v{W1+8*i+2*a+1}, v{W1+8*i+2*a}, s69")
    A(f"""v_lshrrev_b32 v48, 3, v2
    v_mul_u32_u24 v48, 1152, v48
    v_lshl_add_u32 v48, v3, 4, v48
    s_mul_i32 s67, s3, 192
    v_add_u32 v48, s67, v48
    s_lshl_b32 s67, s3, 11
    v_lshl_add_u32 v49, v1, 4, s67
    v_and_b32 v50, 1, v2
    v_lshlrev_b32 v50, 10, v50
    v_lshl_add_u32 v50, v1, 4, v50
    v_bfe_u32 v51, v2, 1, 2
    v_lshl_add_u32 v50, v51, 2, v50
    s_barrier""")
    for i in range(3): A(f"ds_read_b128 v[{184+4*i}:{187+4*i}], v48 offset:{L_XN+64*i}")
    for i in range(3):
        A(f"s_waitcnt lgkmcnt({2-i})")
        MF(32, FE+8*i, 184+4*i, "0" if i == 0 else None)
        MF(36, FE+8*i+4, 184+4*i, "0" if i == 0 else None)
    A(f"""s_nop 6
    ds_write_b128 v49, v[32:35] offset:{L_W1}
    ds_write_b128 v49, v[36:39] offset:{L_W1+1024}
    s_waitcnt lgkmcnt(0)
    s_barrier
    s_cmp_eq_u32 s3, 5
    s_cbranch_scc1 {'L_end' if dis else 'L_w5b'}""")
    for w in range(6): A(f"ds_read_b32 v{32+w}, v50 offset:{L_W1+2048*w}")
    A(f"v_lshlrev_b32 v{B1}, 16, v{B1}\ns_waitcnt lgkmcnt(0)\nv_add_f32 v32, v32, v33\nv_add_f32 v34, v34, v35\nv_add_f32 v36, v36, v37\nv_add_f32 v32, v32, v34\nv_add_f32 v32, v32, v36")
    rbf(32); A(f"v_add_f32 v32, v32, v{B1}"); rbf(32)
    k0 = -2*0.7978845608028654*1.4426950408889634
    A(f"""v_mul_f32 v33, v32, v32
    v_mov_b32 v34, {f2u(k0)}
    v_fmac_f32 v34, {f2u(k0*0.044715)}, v33
    v_mul_f32 v33, v34, v32
    v_exp_f32 v33, v33
    s_nop 0
    v_add_f32 v33, 1.0, v33
    v_rcp_f32 v33, v33
    s_nop 0
    v_mul_f32 v32, v32, v33
    v_cvt_pk_bf16_f32 v32, v32, v32
    s_nop 1""")
    for t in range(8):
        A(f"v_mov_b32_dpp v39, v32 row_newbcast:{t} row_mask:0xf bank_mask:0x3\nv_mov_b32_dpp v39, v32 row_newbcast:{8+t} row_mask:0xf bank_mask:0xc")
        bmask(40+4*(t % 2), 39)
        if t > 0: MF(26, W2+4*(t-1), 40+4*((t-1) % 2), "0" if t == 1 else None)
    A("s_nop 1"); MF(26, W2+28, 44)
    A("s_nop 1")
    quad_store(26, H4, "s97" if dis else "s2")
    endp()
    if dis: A("""L_w5:
    s_cmp_lt_u32 s2, 112
    s_cbranch_scc1 L_w7
    s_barrier
    s_branch L_mlp0
    L_w7:
    s_cmp_ge_u32 s2, 72
    s_cbranch_scc1 L_end
    s_lshl_b32 s96, s2, 1
    s_bfe_u32 s67, s3, 0x10001
    s_add_u32 s96, s96, s67""")
    else: A("L_w5:\ns_cmp_ge_u32 s2, 144\ns_cbranch_scc1 L_end")
    A(f"""s_lshl_b32 s67, {CI}, 1
    v_add_u32 v53, s67, v53
    v_lshrrev_b32 v54, 4, v53
    v_lshlrev_b32 v54, 5, v54
    v_and_b32 v55, 7, v53
    v_add_u32 v54, v54, v55
    v_bfe_u32 v56, v53, 3, 1
    v_mul_u32_u24 v56, 576, v56
    v_add_u32 v56, v56, v54
    v_lshlrev_b32 v54, 1, v54
    v_lshlrev_b32 v57, 1, v56""")
    srd(20, 36, 2304); srd(28, 54, 1152)
    for r in range(4): A(f"buffer_load_ushort v{240+r}, v57, s[20:23], 0 offen offset:{16*r}\nbuffer_load_ushort v{244+r}, v54, s[28:31], 0 offen offset:{16*r}")
    A(f"""{SELU}
    v_lshlrev_b32 v61, 4, v1
    s_lshl_b32 s78, {CI}, 13
    s_add_u32 s81, s78, {H2}""")
    for u in range(1, 8): A(f"s_add_u32 s{81+u}, s81, {1024*u}")
    G = 200
    if seq: A("s_barrier")
    def ld2():
        for u in range(8): A(f"buffer_load_dwordx4 v[{G+4*u}:{G+4*u+3}], v61, s[12:15], s{81+u} offen sc1")
    poll(ld2, range(G+3, G+32, 4), 38)
    for u in range(8): unpack24(G+4*u)
    for u in (4, 2, 1):
        for j in range(4*u): A(f"v_add_f32 v{G+j}, v{G+j}, v{G+4*u+j}")
    quad_reduce(G)
    A(f"v_cvt_pk_bf16_f32 v{G}, v{G}, v{G+1}\nv_cvt_pk_bf16_f32 v{G+2}, v{G+2}, v{G+3}")
    for r in range(4): A(f"v_lshlrev_b32 v{240+r}, 16, v{240+r}")
    def unp(srcs, d):
        for i, x in enumerate(srcs): A(f"v_and_b32 v{d+2*i+1}, 0xffff0000, v{x}\nv_lshlrev_b32 v{d+2*i}, 16, v{x}")
    unp([G, G+2], G+4)
    for r in range(4): A(f"v_add_f32 v{240+r}, v{240+r}, v{G+4+r}")
    A(f"""v_cvt_pk_bf16_f32 v248, v240, v241
    v_cvt_pk_bf16_f32 v249, v242, v243
    v_mov_b32 v250, s80
    v_mov_b32 v251, s80
    s_lshl_b32 s67, {CI}, 5
    s_add_u32 s67, s67, {H3}
    s_mov_b64 exec, 3
    buffer_store_dwordx4 v[248:251], v61, s[12:15], s67 offen sc1
    s_mov_b64 exec, -1""")
    stamp(3)
    if wlate in (1, 3) and not dis: load_mlp(True, False)
    A(f"""{'' if dis else 's_branch L_mlp'}
    L_w5b:
    s_add_u32 s81, s78, {H4}""")
    for u in range(1, 5): A(f"s_add_u32 s{81+u}, s81, {1024*u}")
    stamp(5)
    def zero16():
        for j in range(3): A(f"v_mov_b32 v{G+16+j}, 0")
        A(f"v_mov_b32 v{G+19}, s80")
    zero16(); A(SELU)
    def ld4():
        for u in range(4): A(f"buffer_load_dwordx4 v[{G+4*u}:{G+4*u+3}], v61, s[12:15], s{81+u} offen sc1")
        A(f"s_mov_b32 exec_hi, 0\nbuffer_load_dwordx4 v[{G+16}:{G+19}], v61, s[12:15], s85 offen sc1\ns_mov_b32 exec_hi, -1")
    poll(ld4, range(G+3, G+20, 4), 38)
    for u in range(5): unpack24(G+4*u)
    for j in range(4): A(f"v_add_f32 v{G+j}, v{G+j}, v{G+16+j}")
    for u in (2, 1):
        for j in range(4*u): A(f"v_add_f32 v{G+j}, v{G+j}, v{G+4*u+j}")
    quad_reduce(G)
    A(f"v_cvt_pk_bf16_f32 v{G}, v{G}, v{G+1}\nv_cvt_pk_bf16_f32 v{G+2}, v{G+2}, v{G+3}")
    for r in range(4): A(f"v_lshlrev_b32 v{244+r}, 16, v{244+r}")
    unp([G, G+2], G+4)
    for r in range(4): A(f"v_add_f32 v{244+r}, v{244+r}, v{G+4+r}")
    A(f"v_cvt_pk_bf16_f32 v{G}, v244, v245\nv_cvt_pk_bf16_f32 v{G+2}, v246, v247")
    unp([248, 249], 240); unp([G, G+2], G+4)
    for r in range(4): A(f"v_add_f32 v{240+r}, v{240+r}, v{G+4+r}")
    A(f"v_cvt_pk_bf16_f32 v{G}, v240, v241\nv_cvt_pk_bf16_f32 v{G+2}, v242, v243")
    srd(20, 56, 2304)
    A(f"""s_mov_b64 exec, 3
    buffer_store_short v{G}, v57, s[20:23], 0 offen
    buffer_store_short_d16_hi v{G}, v57, s[20:23], 0 offen offset:16
    buffer_store_short v{G+2}, v57, s[20:23], 0 offen offset:32
    buffer_store_short_d16_hi v{G+2}, v57, s[20:23], 0 offen offset:48
    s_mov_b64 exec, -1""")
    stamp(6)
    A(f"""s_cmp_lg_u32 {CI}, 0
    s_cbranch_scc1 L_end
    v_mov_b32 v48, s80
    s_mov_b32 s67, {NONCE}
    s_mov_b64 exec, 1
    buffer_store_dword v48, v61, s[12:15], s67 offen
    s_mov_b64 exec, -1""")
    endp()
    A(f"""L_w6:
    {NOMLP}
    s_cbranch_scc1 L_end
    v_bfe_u32 v50, v2, 3, 1
    v_mul_u32_u24 v50, 1152, v50
    v_lshl_add_u32 v50, v3, 6, v50
    v_and_b32 v49, 7, v2
    v_lshl_add_u32 v50, v49, 1, v50""")
    for u in range(5): A(f"s_mov_b32 s{81+u}, {H3+1024*u}")
    zero16()
    if seq: A("s_barrier")
    poll(ld4, range(G+3, G+20, 4), 38)
    for u in range(5):
        A(f"v_and_b32 v{G+4*u+3}, 0xffff0000, v{G+4*u+1}\nv_lshlrev_b32 v{G+4*u+2}, 16, v{G+4*u+1}\nv_and_b32 v{G+4*u+1}, 0xffff0000, v{G+4*u}\nv_lshlrev_b32 v{G+4*u}, 16, v{G+4*u}")
    c32 = c8
    def lnsum(first):
        dppred("v_add_f32", [40], c8); swapred("v_add_f32", [40], 41, 16); swapred("v_add_f32", [40], 41, 32)
    A(f"v_add_f32 v40, v{G}, v{G+1}")
    for j in range(2, 20): A(f"v_add_f32 v40, v40, v{G+j}")
    lnsum(1)
    A(f"v_mul_f32 v40, {f2u(1/576)}, v40")
    for j in range(16): A(f"v_sub_f32 v{G+j}, v{G+j}, v40")
    A("s_mov_b32 exec_hi, 0")
    for j in range(16, 20): A(f"v_sub_f32 v{G+j}, v{G+j}, v40")
    A(f"s_mov_b32 exec_hi, -1\nv_mul_f32 v40, v{G}, v{G}")
    for j in range(1, 20): A(f"v_fmac_f32 v40, v{G+j}, v{G+j}")
    lnsum(0)
    A(f"v_mov_b32 v41, {f2u(1e-5)}\nv_fmac_f32 v41, {f2u(1/576)}, v40\nv_rsq_f32 v40, v41\ns_nop 0")
    for j in range(20): A(f"v_mul_f32 v{G+j}, v{G+j}, v40")
    for j in range(10): A(f"v_cvt_pk_bf16_f32 v{G+j}, v{G+2*j}, v{G+2*j+1}")
    for j in range(10):
        if j == 8: A("s_mov_b32 exec_hi, 0")
        o = L_XN + 256*(j//2) + 32*(j % 2)
        A(f"ds_write_b16 v50, v{G+j} offset:{o}\nds_write_b16_d16_hi v50, v{G+j} offset:{o+16}")
    A("s_mov_b32 exec_hi, -1\ns_waitcnt lgkmcnt(0)\ns_barrier")
    stamp(4)
    A("L_end:")
    if stamps:
        A(f"""s_cmp_eq_u32 s93, 0
        s_cbranch_scc1 L_exit
        v_lshlrev_b32 v62, 2, v1
        s_lshl_b32 s92, s2, 6
        s_add_u32 s92, s92, {STAMP}
        s_mov_b32 exec_lo, s93
        s_mov_b32 exec_hi, 0
        buffer_store_dword v63, v62, s[12:15], s92 offen""")
    A("L_exit:\ns_endpgm")
    A(f'''.section .rodata,"a"
    .p2align 6
    .amdhsa_kernel {NAME}_kernel
    .amdhsa_next_free_vgpr 256
    .amdhsa_next_free_sgpr 102
    .amdhsa_accum_offset 256
    .amdhsa_group_segment_fixed_size 0
    .amdhsa_kernarg_size 104
    .amdhsa_user_sgpr_count 2
    .amdhsa_user_sgpr_kernarg_segment_ptr 1
    .amdhsa_system_sgpr_workgroup_id_x 1
    .end_amdhsa_kernel''')
    if warm: L = add_pads(L, "L_tail:", "L_end:", warm)
    if ldpol: L = [(x.replace(" sc1", ["", " sc0 sc1", " sc1 nt", " sc0 sc1 nt"][ldpol]) if x.startswith("buffer_load") else x) for x in L]
    if stpol: L = [(x.replace(" sc1", ["", " sc0 sc1", " sc1 nt", " sc0 sc1 nt"][stpol]) if x.startswith("buffer_store") else x) for x in L]
    return "\n".join(L) + "\n"

if __name__ == "__main__":
    out = sys.argv[1]; kw = {}
    for a in sys.argv[2:]:
        k, v = a.split("="); kw[k] = int(v)
    ref = open("cdna_kernels/" + NAME + ".s.ref").read().split("\n") if not kw.get("stamps") else []
    hdr = "\n".join(l for l in ref if l.startswith(";") and "@launch" not in l)
    open(out, "w").write(gen(header=hdr, **kw))
```

```python
import sys, struct
NAME = "sequential_preLN__gqa_block_cached__dense_activation_gelu__decode"
QBOX, NONCE, H3, H1, H2, H4, STAMP = 0x0, 0x40000, 0x48000, 0x80000, 0x100000, 0x600000, 0x10000000
L_XN, L_Q, L_CNT, L_ACC, L_ML, L_W1 = 0x0, 0xA00, 0xC00, 0x1000, 0x3000, 0x4000
def f2u(x): return "0x%08x" % struct.unpack("<I", struct.pack("<f", x))[0]
SPIN = 1 << 18
CNTB = 0x50000

def add_pads(L, start, end, spacing):
    import subprocess, re, os
    open("_p.s", "w").write("\n".join(x for x in L if "L_pad0" not in x) + "\n")
    subprocess.run(["clang", "-x", "assembler", "-target", "amdgcn-amd-amdhsa", "-mcpu=gfx950", "-c", "_p.s", "-o", "_p.o"], check=True)
    d = subprocess.run(["llvm-objdump", "-d", "_p.o"], capture_output=True, text=True).stdout
    sizes = [4*len(m.group(1).split()) for m in re.finditer(r"// [0-9A-F]+: ((?:[0-9A-F]{8} ?)+)", d)]
    isins = lambda x: x and not x.startswith((";", ".")) and not x.endswith(":")
    out = []; k = 0; inreg = False; dist = 0; n = 0
    for x in L:
        if x == start:
            inreg = True; out.append(x); out.append("PAD"); dist = 4; continue
        if x == end and inreg:
            inreg = False; out.append("PAD")
        if isins(x) and "L_pad0" not in x:
            sz = sizes[k]; k += 1
            if inreg:
                if dist + sz > spacing: out.append("PAD"); dist = 4
                dist += sz
        out.append(x)
    tot = out.count("PAD"); res = []
    for x in out:
        if x == "PAD":
            res.append(f"L_pad{n}:"); n += 1
            res.append(f"s_cbranch_execz L_pad{n}" if n < tot else "s_cbranch_execz L_warmret")
        else: res.append(x)
    sys.stderr.write(f"pads {tot}\n")
    return res

def gen(split2=0, split=0, wo0=0, pt=1, bsl=0, bal=0, bg=2, lead=12, bd=3, mid=0, dis=0, nw=0, mp1=-1, mp2=-1, NBUF=6, stamps=False, wlate=0, pace=-1, seq=0, slp=0, qslp=0, noclr=0, stpol=0, nopf=0, warm=0, nowt=0, exact=0, clr0=0, pair=0, ldpol=0, dyn=0, header=""):
    L = []
    def A(s): L.extend(x.strip() for x in s.strip().split("\n"))
    nlab = [0]
    def lab(p):
        nlab[0] += 1; return f"L_{p}{nlab[0]}"
    def srd(d, base, size):
        A(f"s_mov_b32 s{d}, s{base}\ns_and_b32 s{d+1}, s{base+1}, 0xffff\ns_mov_b32 s{d+2}, {size}\ns_mov_b32 s{d+3}, 0x20000")
    def stamp(i):
        if not stamps: return
        A(f"""s_memrealtime s[90:91]
        s_waitcnt lgkmcnt(0)
        v_writelane_b32 v63, s90, {i}
        s_bitset1_b32 s93, {i}""")
    def endp():
        if stamps: A("s_branch L_end")
        else: A("s_endpgm")
    def stamp0(i):
        if not stamps: return
        l = lab("st"); A(f"s_cmp_lg_u32 s3, 0\ns_cbranch_scc1 {l}"); stamp(i); A(f"{l}:")
    def dpp(op, d, a, b, ctl): A(f"{op}_dpp v{d}, v{a}, v{b} {ctl} row_mask:0xf bank_mask:0xf")
    def swapred(op, regs, tmp, which):
        for i, r in enumerate(regs): A(f"v_mov_b32 v{tmp+i}, v{r}")
        A("s_nop 1")
        for i, r in enumerate(regs): A(f"v_permlane{which}_swap_b32 v{r}, v{tmp+i}")
        for i, r in enumerate(regs): A(f"{op} v{r}, v{r}, v{tmp+i}")
    def dppred(op, regs, ctls):
        for c in ctls:
            if len(regs) < 3: A("s_nop 1")
            for r in regs: dpp(op, r, r, r, c)
    def anysent(regs, t):
        regs = list(regs)
        A(f"v_xor_b32 v{t}, s80, v{regs[0]}")
        for r in regs[1:]: A(f"v_xor_b32 v{t+1}, s80, v{r}\nv_or_b32 v{t}, v{t}, v{t+1}")
        A(f"v_cmp_ne_u32 vcc, 0, v{t}")
    def poll(loads, regs, t, bar=False):
        l0, l1 = lab("poll"), lab("done")
        A(f"s_mov_b32 s70, {SPIN}")
        if bar:
            l2 = lab("pin"); loads(); A(f"s_barrier\ns_branch {l2}")
        A(f"{l0}:")
        loads()
        if bar: A(f"{l2}:")
        A("s_waitcnt vmcnt(0)")
        anysent(regs, t)
        A(f"s_cbranch_vccz {l1}")
        if slp: A(f"s_sleep {slp}")
        A(f"s_sub_u32 s70, s70, 1\ns_cbranch_scc0 {l0}\n{l1}:")
    def pack24(d):
        A("s_mov_b32 s68, 0x07060501\ns_mov_b32 s69, 0x07060502\ns_mov_b32 s79, 0x07060503")
        for r, sg in enumerate((68, 69, 79)): A(f"v_perm_b32 v{d+r}, v{d+r}, v{d+3}, s{sg}")
    def unpack24(d):
        A(f"v_perm_b32 v{d+3}, v{d+1}, v{d}, s68\nv_perm_b32 v{d+3}, v{d+2}, v{d+3}, s69")
    SELU = "s_mov_b32 s68, 0x0c0c0400\ns_mov_b32 s69, 0x0401000c"
    def bmask(dst, src):
        for r in range(4): A(f"v_and_b32 v{dst+r}, v{6+r}, v{src}")
    def MF(d, a, b, c=None):
        cs = f"v[{d}:{d+3}]" if c is None else c
        A(f"v_mfma_f32_16x16x32_bf16 v[{d}:{d+3}], v[{a}:{a+3}], v[{b}:{b+3}], {cs}")
    def lnstats(vals, t):
        A(f"v_add_f32 v{t}, v{vals[0]}, v{vals[1]}")
        for v in vals[2:]: A(f"v_add_f32 v{t}, v{t}, v{v}")
        dppred("v_add_f32", [t], ["row_ror:8", "row_ror:4", "row_ror:2", "row_ror:1"])
        swapred("v_add_f32", [t], t+1, 16)
        A(f"v_mul_f32 v{t}, {f2u(1/576)}, v{t}")
        for v in vals: A(f"v_sub_f32 v{v}, v{v}, v{t}")
        A(f"v_mul_f32 v{t}, v{vals[0]}, v{vals[0]}")
        for v in vals[1:]: A(f"v_fmac_f32 v{t}, v{v}, v{v}")
        dppred("v_add_f32", [t], ["row_ror:8", "row_ror:4", "row_ror:2", "row_ror:1"])
        swapred("v_add_f32", [t], t+1, 16)
        A(f"v_mov_b32 v{t+1}, {f2u(1e-5)}\nv_fmac_f32 v{t+1}, {f2u(1/576)}, v{t}\nv_rsq_f32 v{t}, v{t+1}\ns_nop 0")
        for v in vals: A(f"v_mul_f32 v{v}, v{v}, v{t}")
    SL = 64
    NT = 256 - bal
    NW = 7 if bal else 8
    L_TAB = 0x8000
    def tile_loads(k, sreg):
        b = SL + 32*k
        for t in range(4): A(f"buffer_load_dwordx4 v[{b+4*t}:{b+4*t+3}], v4, s[4:7], s{sreg} offen offset:{64*t} nt")
        for t in range(4): A(f"buffer_load_dwordx4 v[{b+16+4*t}:{b+16+4*t+3}], v5, s[8:11], s{sreg} offen offset:{256*t} nt")
    def prefetch(paced=False, k0=0, k1=None):
        A(f"s_lshl_b32 s67, s3, 12\ns_add_u32 s67, s67, s66\ns_add_u32 s67, s67, {k0*NW*0x1000}")
        if dyn: A("s_lshl_b32 s68, s64, 15\ns_add_u32 s67, s67, s68")
        for k in range(k0, k1 or NBUF):
            tile_loads(k, 67)
            if k + 1 < NBUF:
                A("s_add_u32 s67, s67, %d" % (0x40000 if dyn else NW*0x1000))
                if paced and pace >= 0: A(f"s_waitcnt vmcnt({pace})")
    WO, W1, W2, B1 = (208 if wo0 else 64), 80, 104, 136
    assert not wo0 or NBUF <= 4
    NOMLP = "s_cmp_lt_u32 s2, 112" if dis else "s_cmp_ge_u32 s2, 144"
    CI = "s96" if dis else "s2"
    def load_wo():
        l = lab("wo"); A(f"s_cmp_gt_u32 s3, 4\ns_cbranch_scc1 {l}")
        srd(20, 44, 4096*1152)
        A(f"""s_lshl_b32 s67, s62, 8
        s_lshl_b32 s68, s63, 7
        s_add_u32 s67, s67, s68
        s_add_u32 s67, s67, s64
        s_mul_i32 s67, s67, 1152
        s_lshl_b32 s68, s3, 8
        s_add_u32 s67, s67, s68
        v_mul_u32_u24 v48, {32*1152}, v3
        v_lshl_add_u32 v48, v2, 4, v48""")
        for t in range(4):
            A(f"buffer_load_dwordx4 v[{WO+4*t}:{WO+4*t+3}], v48, s[20:23], s67 offen nt")
            if t < 3: A("s_add_u32 s67, s67, 9216")
        A(f"{l}:")
    def load_mlp(do1=True, do2=True, paced=False):
        l = lab("mlp"); l2 = lab("mlp")
        A(f"{NOMLP}\ns_cbranch_scc1 {l}\ns_cmp_gt_u32 s3, 5\ns_cbranch_scc1 {l}")
        if do1: load_w1(paced)
        if do2: load_w2(l, paced)
        A(f"{l}:")
    def load_w1(paced):
        srd(24, 48, 576*9216)
        A(f"""s_mul_i32 s67, s3, {96*9216}
        s_lshl_b32 s68, s89, 6
        s_add_u32 s67, s67, s68
        v_mul_u32_u24 v49, {8*9216}, v3
        v_lshl_add_u32 v49, v2, 2, v49""")
        for i in range(24):
            A(f"buffer_load_dword v{W1+i}, v49, s[24:27], s67 offen {'' if pair == 1 else 'nt'}")
            if i < 23: A(f"s_add_u32 s67, s67, {9216 if i % 8 != 7 else 25*9216}")
            if paced and mp1 >= 0 and i >= mp1: A(f"s_waitcnt vmcnt({mp1})")
    def load_w2(l, paced):
        A(f"s_cmp_gt_u32 s3, 4\ns_cbranch_scc1 {l}")
        srd(28, 52, 4608*1152)
        A(f"""s_mul_i32 s67, s89, {32*1152}
        s_lshl_b32 s68, s3, 8
        s_add_u32 s67, s67, s68
        v_mul_u32_u24 v50, {8*1152}, v3
        v_lshl_add_u32 v50, v2, 4, v50""")
        for t in range(8):
            A(f"buffer_load_dwordx4 v[{W2+4*t}:{W2+4*t+3}], v50, s[28:31], s67 offen offset:{1152*(t%4)} nt")
            if t == 3: A("s_add_u32 s67, s67, 4608")
            if paced and mp2 >= 0: A(f"s_waitcnt vmcnt({mp2})")
        srd(24, 50, 4608*2)
        A(f"""v_and_b32 v51, 7, v2
        v_lshl_add_u32 v51, v3, 3, v51
        v_lshlrev_b32 v51, 1, v51
        s_lshl_b32 s67, s89, 6
        buffer_load_ushort v{B1}, v51, s[24:27], s67 offen""")
    def quad_store(d, box, pi="s2"):
        A(f"""s_lshl_b32 s67, s3, 18
        s_lshl_b32 s68, {pi}, 5
        s_add_u32 s67, s67, s68
        s_add_u32 s67, s67, {box}
        s_nop 0""")
        pack24(d)
        A(f"""v_mov_b32 v{d+3}, s80
        s_cmp_eq_u32 s3, 4
        s_cselect_b32 exec_hi, 0, -1
        buffer_store_dwordx4 v[{d}:{d+3}], v52, s[12:15], s67 offen sc1
        s_mov_b32 exec_hi, -1""")
    def quad_reduce(d):
        dppred("v_add_f32", [d, d+1, d+2, d+3], ["quad_perm:[2,3,0,1]", "row_ror:4", "row_ror:8"])
        swapred("v_add_f32", [d, d+1, d+2, d+3], 44, 16)
        swapred("v_add_f32", [d, d+1, d+2, d+3], 44, 32)
    def rbf(r, t=None):
        A(f"v_cvt_pk_bf16_f32 v{r}, v{r}, v{r}\nv_and_b32 v{r}, 0xffff0000, v{r}")

    A(header)
    A("; @launch grid=(256,1,1) block=(512,1,1) lds=90000")
    A('.amdgcn_target "amdgcn-amd-amdhsa--gfx950"\n.text')
    A(f".globl {NAME}_kernel\n.p2align 8\n.type {NAME}_kernel,@function\n{NAME}_kernel:")
    A(f"""s_cmp_ge_u32 s2, 256
    s_cbranch_scc1 L_exit
    s_mov_b32 s93, 0
    s_load_dwordx16 s[36:51], s[0:1], 0
    s_load_dwordx8 s[52:59], s[0:1], 64
    s_load_dwordx2 s[60:61], s[0:1], 96
    v_lshrrev_b32 v48, 6, v0
    v_and_b32 v1, 63, v0
    v_readfirstlane_b32 s3, v48
    v_and_b32 v2, 15, v1
    v_lshrrev_b32 v3, 4, v1
    v_lshlrev_b32 v4, 8, v2
    v_lshl_add_u32 v4, v3, 4, v4
    v_lshlrev_b32 v5, 4, v2
    v_lshl_add_u32 v5, v3, 10, v5
    v_mov_b32 v57, 0
    v_lshlrev_b32 v61, 4, v1
    s_lshr_b32 s62, s2, 3
    s_and_b32 s62, s62, 15
    s_lshr_b32 s63, s2, 7
    s_and_b32 s64, s2, 7
    s_lshl_b32 s65, s63, 3
    s_add_u32 s65, s65, s64
    s_lshl_b32 s66, s2, 20
    s_andn2_b32 s89, s2, 15
    s_lshl_b32 s67, s64, 1
    s_add_u32 s89, s89, s67
    s_bfe_u32 s67, s2, 0x10003
    s_add_u32 s89, s89, s67
    {"" if pair else "s_mov_b32 s89, s2"}
    s_mov_b32 s76, {f2u(1.4426950408889634 * 128**-0.5)}
    s_mov_b32 s77, {f2u(-1.4426950408889634 * 128**-0.5)}
    s_waitcnt lgkmcnt(0)
    s_load_dword s80, s[60:61], {NONCE}""")
    if dyn: A(f"""s_lshr_b32 s94, s2, 3
    s_lshl_b32 s66, s94, 23
    s_mul_i32 s94, s94, {dyn}
    s_add_u32 s94, s94, {CNTB}
    s_load_dword s95, s[60:61], s94""")
    if bal: A(f"s_andn2_b32 s66, s2, 7\ns_lshl_b32 s66, s66, 20\ns_mul_i32 s67, s64, {NT*4096}\ns_add_u32 s66, s66, s67")
    if dis: A("s_sub_u32 s89, s89, 112\ns_sub_u32 s97, s2, 112")
    srd(4, 38, 0x10000000); srd(8, 40, 0x10000000); srd(12, 60, 0x40000000)
    A("s_cmp_eq_u32 s3, 0\ns_cbranch_scc1 L_qphase")
    if nopf and not nw: A("s_waitcnt lgkmcnt(0)")
    if nopf: A("s_barrier")
    if bal: A("s_cmp_eq_u32 s3, 7\ns_cbranch_scc1 L_masks")
    prefetch(True, 0, split or None)
    if wo0: load_wo()
    A("L_masks:\ns_waitcnt lgkmcnt(0)\ns_add_u32 s80, s80, 0x9e3779b9")
    A("""v_and_b32 v48, 1, v2
    v_lshlrev_b32 v48, 4, v48
    v_mov_b32 v49, 0xffff
    v_lshlrev_b32 v49, v48, v49
    v_bfe_u32 v48, v2, 1, 2""")
    for r in range(4): A(f"v_cmp_eq_u32 vcc, {r}, v48\ns_nop 1\nv_cndmask_b32 v{6+r}, 0, v49, vcc")
    A("s_cmp_eq_u32 s3, 0\ns_cbranch_scc1 L_qphase2")
    if split: A("s_barrier"); prefetch(False, split, split2 or None)
    if split2: A("s_barrier"); prefetch(False, split2)
    A("s_barrier\ns_branch L_main")
    A("L_qphase:")
    stamp(0)
    srd(20, 36, 2304); srd(24, 42, 576*8192)
    XQ = 200
    A(f"""v_lshrrev_b32 v48, 5, v1
    v_and_b32 v49, 31, v1
    v_mul_u32_u24 v50, 1152, v48
    v_lshl_add_u32 v51, v49, 4, v50
    v_lshl_add_u32 v50, v49, 2, v50
    buffer_load_dwordx4 v[{XQ}:{XQ+3}], v51, s[20:23], 0 offen
    buffer_load_dwordx4 v[{XQ+4}:{XQ+7}], v51, s[20:23], 0 offen offset:512
    buffer_load_dword v{XQ+8}, v50, s[20:23], 0 offen offset:1024
    s_lshl_b32 s67, s62, 1
    s_add_u32 s67, s67, s63
    s_lshl_b32 s67, s67, 8
    s_mul_i32 s68, s64, {72*8192}
    s_add_u32 s67, s67, s68
    v_mul_u32_u24 v52, {18*8192}, v3
    v_lshl_add_u32 v52, v2, 4, v52""")
    for t in range(18):
        A(f"buffer_load_dwordx4 v[{SL+4*t}:{SL+4*t+3}], v52, s[24:27], s67 offen nt")
        if t < 17: A("s_add_u32 s67, s67, 8192")
    if nopf == 2: A("s_barrier")
    if bal:
        A(f"""s_cmp_lg_u32 s64, 0
        s_cbranch_scc1 L_cz
        s_lshl_b32 s67, s2, 4
        s_add_u32 s67, s67, {CNTB}
        v_mov_b32 v53, 0
        s_mov_b64 exec, 1
        buffer_store_dword v53, v53, s[12:15], s67 offen sc1
        s_mov_b64 exec, -1
        L_cz:""")
    stamp(11)
    A("""s_waitcnt vmcnt(18)
    s_branch L_masks
    L_qphase2:""")
    XF = 210
    for i in range(9): A(f"v_lshlrev_b32 v{XF+2*i}, 16, v{XQ+i}\nv_and_b32 v{XF+2*i+1}, 0xffff0000, v{XQ+i}")
    lnstats(list(range(XF, XF+18)), 40)
    for i in range(9): A(f"v_cvt_pk_bf16_f32 v{XQ+i}, v{XF+2*i}, v{XF+2*i+1}")
    A(f"""ds_write_b128 v51, v[{XQ}:{XQ+3}] offset:{L_XN}
    ds_write_b128 v51, v[{XQ+4}:{XQ+7}] offset:{L_XN+512}
    ds_write_b32 v50, v{XQ+8} offset:{L_XN+1024}
    v_lshrrev_b32 v48, 3, v2
    v_mul_u32_u24 v48, 1152, v48
    v_mul_u32_u24 v49, 36, v3
    s_mul_i32 s67, s64, 144
    v_add3_u32 v48, v48, v49, s67
    v_mov_b32 v49, {NW*NBUF}
    v_mov_b32 v54, 0
    ds_write_b32 v54, v49 offset:{L_CNT}
    v_mov_b32 v56, 0
    v_mov_b32 v57, 0
    v_mov_b32 v58, 0
    v_mov_b32 v59, 0
    {f"ds_write_b128 v61, v[56:59] offset:{L_TAB}" if bal else ""}
    s_waitcnt lgkmcnt(0)""")
    stamp(13)
    for i in range(9): A(f"ds_read_b32 v{XQ+i}, v48 offset:{L_XN+4*i}")
    A("s_mov_b32 s68, 0x01000100\ns_mov_b32 s69, 0x03020302\ns_waitcnt vmcnt(0) lgkmcnt(0)")
    stamp(8)
    if nopf == 1: A("s_barrier")
    for t in range(18):
        bs = 40 + 4*(t % 2)
        A(f"v_perm_b32 v55, v{XQ+t//2}, v{XQ+t//2}, s{68+t%2}")
        bmask(bs, 55)
        if t > 0: MF(26, SL+4*(t-1), 40+4*((t-1) % 2), "0" if t == 1 else None)
    A("s_nop 1"); MF(26, SL+68, 44)
    A(f"""v_lshrrev_b32 v48, 3, v2
    v_lshlrev_b32 v48, 13, v48
    v_and_b32 v49, 7, v2
    v_lshl_add_u32 v49, v3, 3, v49
    v_lshl_add_u32 v48, v49, 4, v48
    s_lshl_b32 s67, s62, 14
    s_lshl_b32 s68, s63, 12
    s_add_u32 s67, s67, s68
    s_lshl_b32 s68, s64, 9
    s_add_u32 s67, s67, s68
    s_nop 0""")
    pack24(26)
    A("v_mov_b32 v29, s80\nbuffer_store_dwordx4 v[26:29], v48, s[12:15], s67 offen sc1")
    stamp(9)
    A(f"""
    v_lshrrev_b32 v48, 5, v1
    v_and_b32 v49, 31, v1
    v_lshlrev_b32 v50, 12, v48
    v_lshl_add_u32 v50, v49, 4, v50
    s_lshl_b32 s67, s62, 14
    s_lshl_b32 s68, s63, 13
    s_add_u32 s67, s67, s68""")
    A(f"""v_lshrrev_b32 v51, 3, v49
    v_lshlrev_b32 v51, 6, v51
    v_and_b32 v49, 7, v49
    v_lshl_add_u32 v51, v49, 1, v51
    v_lshl_add_u32 v51, v48, 8, v51
    {SELU}
    s_mov_b32 s70, {SPIN}""")
    def ldq():
        for u in range(8): A(f"buffer_load_dwordx4 v[{SL+4*u}:{SL+4*u+3}], v50, s[12:15], s67 offen offset:{512*u} sc1")
    if split2: ldq(); A("s_barrier\ns_waitcnt vmcnt(0)")
    if split: ldq(); A("s_barrier\ns_branch L_qpin")
    A("L_qpoll:"); ldq(); A("L_qpin:")
    A(f"s_waitcnt vmcnt(0)\nv_xor_b32 v38, s80, v{SL+3}")
    for u in range(1, 8): A(f"v_xor_b32 v39, s80, v{SL+4*u+3}\nv_or_b32 v38, v38, v39")
    A("v_cmp_ne_u32 vcc, 0, v38\ns_cbranch_vccz L_qgot\ns_sub_u32 s70, s70, 1\ns_cbranch_scc0 L_qpoll\nL_qgot:")
    stamp(10)
    for u in range(8): unpack24(SL+4*u)
    for u in range(1, 8):
        for r in range(4): A(f"v_add_f32 v{SL+r}, v{SL+r}, v{SL+4*u+r}")
    for r in range(4): A(f"v_cvt_pk_bf16_f32 v{SL+r}, v{SL+r}, v{SL+r}")
    for r in range(4): A(f"ds_write_b16 v51, v{SL+r} offset:{L_Q+16*r}")
    A("s_waitcnt lgkmcnt(0)\ns_barrier")
    stamp(1)
    prefetch()
    if wo0: load_wo()
    A(f"""L_main:
    v_lshrrev_b32 v48, 3, v2
    v_lshlrev_b32 v48, 8, v48
    v_lshl_add_u32 v48, v3, 4, v48""")
    for t in range(4): A(f"ds_read_b128 v[{10+4*t}:{13+4*t}], v48 offset:{L_Q+64*t}")
    A(f"""v_mov_b32 v26, 0
    v_mov_b32 v27, 0
    v_mov_b32 v28, 0
    v_mov_b32 v29, 0
    v_mov_b32 v30, 0xff800000
    v_mov_b32 v31, 0
    v_mov_b32 v52, {L_CNT}
    v_mov_b32 v55, 1
    s_mov_b32 s71, {NBUF}
    s_waitcnt lgkmcnt(0)""")
    if warm: A("s_cmp_lg_u32 s3, 7\ns_cbranch_scc1 L_loop\ns_mov_b64 exec, 0\ns_branch L_pad0\nL_warmret:\ns_mov_b64 exec, -1")
    if dyn: A(f"""s_sub_u32 s95, s95, {64*(NBUF+1)}
    s_lshl_b32 s67, s64, 3
    s_add_u32 s67, s67, s3
    s_add_u32 s67, s67, {64*NBUF}
    s_add_u32 s67, s67, s95
    v_mov_b32 v54, s67
    v_mov_b32 v52, 0
    s_waitcnt vmcnt({8*(NBUF-1)})""")
    if bal: A("s_cmp_eq_u32 s3, 7\ns_cbranch_scc1 L_sch")
    A("L_loop:")
    for k in range(NBUF):
        b = SL + 32*k
        A(f"s_waitcnt vmcnt({(9 if dyn else 8)*(NBUF-1)})")
        for t in range(4): MF(32, b+4*t, 10+4*t, "0" if t == 0 else None)
        A("s_nop 7" if dyn else "s_mov_b64 exec, 1\nds_add_rtn_u32 v54, v52, v55\ns_mov_b64 exec, -1\ns_nop 4")
        A("""v_max3_f32 v36, v32, v33, v34
        v_max_f32 v36, v36, v35""")
        swapred("v_max_f32", [36], 37, 16)
        swapred("v_max_f32", [36], 37, 32)
        A("""v_max_f32 v36, v36, v30
        v_mul_f32 v37, s77, v36
        v_fma_f32 v38, v30, s76, v37
        v_fma_f32 v32, v32, s76, v37
        v_exp_f32 v38, v38
        v_exp_f32 v32, v32
        v_fma_f32 v33, v33, s76, v37
        v_fma_f32 v34, v34, s76, v37
        v_fma_f32 v35, v35, s76, v37
        v_mov_b32 v30, v36
        v_cvt_pk_bf16_f32 v39, v32, v32
        v_exp_f32 v33, v33
        v_exp_f32 v34, v34
        v_exp_f32 v35, v35
        v_mul_f32 v26, v26, v38
        v_mul_f32 v27, v27, v38
        v_mul_f32 v28, v28, v38
        v_mul_f32 v29, v29, v38
        v_fma_f32 v31, v31, v38, v32""")
        bmask(40, 39)
        for r in range(1, 4):
            A(f"v_cvt_pk_bf16_f32 v39, v{32+r}, v{32+r}\nv_add_f32 v31, v31, v{32+r}")
            MF(26, b+16+4*(r-1), 40+4*((r-1) % 2))
            bmask(40+4*(r % 2), 39)
        A("s_waitcnt %s\nv_readfirstlane_b32 s67, v54" % ("vmcnt(8)" if dyn else "lgkmcnt(0)"))
        MF(26, b+28, 44)
        ls, ln = lab("skip"), lab("next")
        if stamps and mid:
            for iv, si in ((128, 12), (224, 14)):
                lm = lab("mid"); A(f"s_cmp_lg_u32 s67, {iv}\ns_cbranch_scc1 {lm}"); stamp(si); A(f"{lm}:")
        if dyn:
            assert NBUF == 2
            A(f"""s_sub_u32 s67, s67, s95
            s_cmp_ge_u32 s67, 2048
            s_cbranch_scc1 {ls}
            v_mov_b32 v54, 1
            s_lshl_b32 s67, s67, 12
            s_add_u32 s67, s67, s66
            s_mov_b64 exec, 1
            buffer_atomic_add v54, v52, s[12:15], s94 offen sc0 sc1
            s_mov_b64 exec, -1""")
        elif bal:
            lp, lg, lw = lab("pool"), lab("go"), lab("pw")
            A(f"s_cmp_ge_u32 s67, {NT}\ns_cbranch_scc1 {lp}\ns_lshl_b32 s67, s67, 12\ns_add_u32 s67, s67, s66\n{lg}:")
        else: A(f"s_cmp_ge_u32 s67, {NT}\ns_cbranch_scc1 {ls}\ns_lshl_b32 s67, s67, 12\ns_add_u32 s67, s67, s66")
        tile_loads(k, 67)
        A(f"s_branch {ln}" if k + 1 < NBUF else "s_branch L_loop")
        if bal:
            A(f"""{lp}:
            s_sub_u32 s67, s67, {NT}
            s_lshr_b32 s68, s67, {bg}
            s_lshl_b32 s68, s68, 2
            v_mov_b32 v56, s68
            s_and_b32 s67, s67, {(1 << bg) - 1}
            s_lshl_b32 s67, s67, 12
            {lw}:
            ds_read_b32 v57, v56 offset:{L_TAB}
            s_waitcnt lgkmcnt(0)
            v_readfirstlane_b32 s68, v57
            s_cmp_eq_u32 s68, 0
            s_cbranch_scc1 {lw}
            s_add_u32 s67, s67, s68
            s_cmp_lg_u32 s68, 2
            s_cbranch_scc1 {lg}""")
        A(f"{ls}:\ns_sub_u32 s71, s71, 1\ns_cmp_eq_u32 s71, 0\ns_cbranch_scc1 L_tail")
        if not exact: A("buffer_load_dword v56, v53, s[16:19], 0 offen sc1\ns_waitcnt vmcnt(0)")
        else:
            tgt = ln if k + 1 < NBUF else "L_loop"
            for j in range(NBUF-1, 0, -1):
                lj = lab("dr")
                if j > 1: A(f"s_cmp_lg_u32 s71, {j}\ns_cbranch_scc1 {lj}")
                A(f"s_waitcnt vmcnt({8*(j-1)})")
                if j > 1: A(f"s_branch {tgt}\n{lj}:")
        A(f"{ln}:" if k + 1 < NBUF else "s_branch L_loop")
    if bal:
        Gt = 1 << bg
        A(f"""L_sch:
        s_mov_b32 s72, 0
        s_mov_b32 s73, {NT - lead}
        s_andn2_b32 s74, s2, 7
        s_lshl_b32 s75, s74, 4
        s_add_u32 s75, s75, {CNTB}
        s_lshl_b32 s74, s74, 20
        s_add_u32 s74, s74, {8*NT*4096}
        v_mov_b32 v53, 0
        {"buffer_load_dword v58, v53, s[4:7], s74 offen" if pt else ""}
        {"buffer_load_dword v59, v53, s[8:11], s74 offen" if pt else ""}
        v_lshlrev_b32 v56, 2, v1
        L_sch0:""")
        for k in range(bd):
            lw, lq = lab("sw"), lab("sq")
            A(f"""{lw}:
            {f"s_sleep {bsl}" if bsl else ""}
            ds_read_b32 v57, v52
            s_waitcnt lgkmcnt(0)
            v_readfirstlane_b32 s67, v57
            s_cmp_lt_u32 s67, s73
            s_cbranch_scc1 {lw}
            v_mov_b32 v{70+k}, 1
            s_mov_b64 exec, 1
            buffer_atomic_add v{70+k}, v53, s[12:15], s75 offen sc0 sc1
            s_mov_b64 exec, -1
            s_add_u32 s73, s73, {Gt}
            s_add_u32 s72, s72, 1
            s_cmp_lt_u32 s72, {bd}
            s_cbranch_scc1 {lq}
            s_waitcnt vmcnt({bd-1})
            v_readfirstlane_b32 s67, v{70+(k+1) % bd}
            s_cmp_ge_u32 s67, {8*bal//Gt}
            s_cbranch_scc1 L_schend
            s_lshl_b32 s67, s67, {12+bg}
            s_add_u32 s67, s67, s74
            v_mov_b32 v57, s67
            s_mov_b64 exec, 1
            ds_write_b32 v56, v57 offset:{L_TAB}
            s_mov_b64 exec, -1
            v_add_u32 v56, 4, v56
            {lq}:""")
        A(f"""s_branch L_sch0
        L_schend:
        v_mov_b32 v57, 2
        ds_write_b32 v56, v57 offset:{L_TAB}
        s_waitcnt vmcnt(0)""")
    A("L_tail:")
    if not nowt and not wo0: load_wo()
    if wlate == 0 and not nowt: load_mlp()
    if wlate == 2: load_mlp(True, False)
    if wlate == 3: load_mlp(False, True)
    swapred("v_add_f32", [31], 37, 16)
    swapred("v_add_f32", [31], 37, 32)
    A(f"""v_mul_f32 v30, s76, v30
    s_lshl_b32 s67, s3, 9
    v_lshl_add_u32 v54, v1, 3, s67
    v_lshlrev_b32 v55, 1, v54
    ds_write_b64 v54, v[30:31] offset:{L_ML}
    ds_write_b128 v55, v[26:29] offset:{L_ACC}
    v_lshrrev_b32 v52, 1, v1
    v_lshlrev_b32 v52, 13, v52
    v_and_b32 v53, 1, v1
    v_lshl_add_u32 v52, v53, 4, v52
    s_waitcnt lgkmcnt(0)
    s_barrier
    s_cmp_eq_u32 s3, 5
    s_cbranch_scc1 L_w5
    s_cmp_eq_u32 s3, 6
    s_cbranch_scc1 L_w6
    s_cmp_eq_u32 s3, 7
    s_cbranch_scc1 {'L_w7' if dis else 'L_end'}
    s_cmp_lg_u32 s3, 0
    s_cbranch_scc1 L_h1""")
    stamp(2)
    CA, CM = 160, 192
    for w in range(8): A(f"ds_read_b64 v[{CM+2*w}:{CM+2*w+1}], v54 offset:{L_ML+512*w}")
    for w in range(8): A(f"ds_read_b128 v[{CA+4*w}:{CA+4*w+3}], v55 offset:{L_ACC+1024*w}")
    A(f"s_waitcnt lgkmcnt(8)\nv_max3_f32 v30, v{CM}, v{CM+2}, v{CM+4}\nv_max3_f32 v30, v30, v{CM+6}, v{CM+8}\nv_max3_f32 v30, v30, v{CM+10}, v{CM+12}\nv_max_f32 v30, v30, v{CM+14}")
    for w in range(8): A(f"v_sub_f32 v{CM+2*w}, v{CM+2*w}, v30")
    for w in range(8): A(f"v_exp_f32 v{CM+2*w}, v{CM+2*w}")
    A(f"s_waitcnt lgkmcnt(0)\nv_mul_f32 v31, v{CM}, v{CM+1}")
    for r in range(4): A(f"v_mul_f32 v{26+r}, v{CM}, v{CA+r}")
    for w in range(1, 8):
        A(f"v_fmac_f32 v31, v{CM+2*w}, v{CM+2*w+1}")
        for r in range(4): A(f"v_fmac_f32 v{26+r}, v{CM+2*w}, v{CA+4*w+r}")
    A(f"""v_rcp_f32 v32, v31
    v_log_f32 v31, v31
    v_lshlrev_b32 v54, 10, v2
    v_lshl_add_u32 v54, v3, 4, v54
    s_lshl_b32 s67, s62, 14
    s_lshl_b32 s68, s65, 6
    s_add_u32 s67, s67, s68
    s_add_u32 s67, s67, {H1}""")
    for r in range(4): A(f"v_mul_f32 v{26+r}, v{26+r}, v32")
    A(f"""v_cvt_pk_bf16_f32 v26, v26, v27
    v_cvt_pk_bf16_f32 v27, v28, v29
    v_add_f32 v28, v30, v31
    v_mov_b32 v29, s80
    buffer_store_dwordx4 v[26:29], v54, s[12:15], s67 offen sc1
    L_h1:
    v_lshlrev_b32 v54, 6, v2
    v_lshl_add_u32 v54, v3, 4, v54
    s_lshl_b32 s67, s62, 4
    s_add_u32 s67, s67, s65
    s_lshl_b32 s67, s67, 10
    s_add_u32 s67, s67, {H1}""")
    poll(lambda: A("buffer_load_dwordx4 v[32:35], v54, s[12:15], s67 offen sc1"), [35], 38)
    A("""v_mov_b32 v38, v34
    v_mov_b32 v37, v34
    v_and_b32 v35, 0xffff0000, v33
    v_lshlrev_b32 v34, 16, v33
    v_and_b32 v33, 0xffff0000, v32
    v_lshlrev_b32 v32, 16, v32""")
    c8 = ["quad_perm:[1,0,3,2]", "quad_perm:[2,3,0,1]", "row_half_mirror"]
    dppred("v_max_f32", [38], c8)
    A("v_sub_f32 v37, v37, v38\nv_exp_f32 v37, v37\ns_nop 0")
    for r in range(4): A(f"v_mul_f32 v{32+r}, v{32+r}, v37")
    dppred("v_add_f32", [37, 32, 33, 34, 35], c8)
    A("v_rcp_f32 v37, v37\ns_nop 0")
    for r in range(4): A(f"v_mul_f32 v{32+r}, v{32+r}, v37")
    for t in range(4):
        A(f"v_cvt_pk_bf16_f32 v39, v{32+t}, v{32+t}")
        bmask(40+4*(t % 2), 39)
        if t > 0: MF(26, WO+4*(t-1), 40+4*((t-1) % 2), "0" if t == 1 else None)
    A("s_nop 1"); MF(26, WO+12, 44)
    A("s_nop 1")
    quad_store(26, H2)
    stamp0(7)
    if dis: A("s_barrier\ns_cmp_lt_u32 s2, 112\ns_cbranch_scc1 L_end\nL_mlp0:")
    else:
        A("s_cmp_ge_u32 s2, 144\ns_cbranch_scc1 L_end")
        if seq: A("s_barrier")
    if wlate == 1: load_mlp(True, True, True)
    if wlate == 2: load_mlp(False, True, True)
    if wlate == 3: load_mlp(True, False, True)
    A("L_mlp:\ns_mov_b32 s68, 0x05040100\ns_mov_b32 s69, 0x07060302\ns_waitcnt vmcnt(0)")
    FE = 160
    for i in range(3):
        for a in range(4):
            A(f"v_perm_b32 v{FE+8*i+a}, v{W1+8*i+2*a+1}, v{W1+8*i+2*a}, s68\nv_perm_b32 v{FE+8*i+4+a}, v{W1+8*i+2*a+1}, v{W1+8*i+2*a}, s69")
    A(f"""v_lshrrev_b32 v48, 3, v2
    v_mul_u32_u24 v48, 1152, v48
    v_lshl_add_u32 v48, v3, 4, v48
    s_mul_i32 s67, s3, 192
    v_add_u32 v48, s67, v48
    s_lshl_b32 s67, s3, 11
    v_lshl_add_u32 v49, v1, 4, s67
    v_and_b32 v50, 1, v2
    v_lshlrev_b32 v50, 10, v50
    v_lshl_add_u32 v50, v1, 4, v50
    v_bfe_u32 v51, v2, 1, 2
    v_lshl_add_u32 v50, v51, 2, v50
    s_barrier""")
    for i in range(3): A(f"ds_read_b128 v[{184+4*i}:{187+4*i}], v48 offset:{L_XN+64*i}")
    for i in range(3):
        A(f"s_waitcnt lgkmcnt({2-i})")
        MF(32, FE+8*i, 184+4*i, "0" if i == 0 else None)
        MF(36, FE+8*i+4, 184+4*i, "0" if i == 0 else None)
    A(f"""s_nop 6
    ds_write_b128 v49, v[32:35] offset:{L_W1}
    ds_write_b128 v49, v[36:39] offset:{L_W1+1024}
    s_waitcnt lgkmcnt(0)
    s_barrier
    s_cmp_eq_u32 s3, 5
    s_cbranch_scc1 {'L_end' if dis else 'L_w5b'}""")
    for w in range(6): A(f"ds_read_b32 v{32+w}, v50 offset:{L_W1+2048*w}")
    A(f"v_lshlrev_b32 v{B1}, 16, v{B1}\ns_waitcnt lgkmcnt(0)\nv_add_f32 v32, v32, v33\nv_add_f32 v34, v34, v35\nv_add_f32 v36, v36, v37\nv_add_f32 v32, v32, v34\nv_add_f32 v32, v32, v36")
    rbf(32); A(f"v_add_f32 v32, v32, v{B1}"); rbf(32)
    k0 = -2*0.7978845608028654*1.4426950408889634
    A(f"""v_mul_f32 v33, v32, v32
    v_mov_b32 v34, {f2u(k0)}
    v_fmac_f32 v34, {f2u(k0*0.044715)}, v33
    v_mul_f32 v33, v34, v32
    v_exp_f32 v33, v33
    s_nop 0
    v_add_f32 v33, 1.0, v33
    v_rcp_f32 v33, v33
    s_nop 0
    v_mul_f32 v32, v32, v33
    v_cvt_pk_bf16_f32 v32, v32, v32
    s_nop 1""")
    for t in range(8):
        A(f"v_mov_b32_dpp v39, v32 row_newbcast:{t} row_mask:0xf bank_mask:0x3\nv_mov_b32_dpp v39, v32 row_newbcast:{8+t} row_mask:0xf bank_mask:0xc")
        bmask(40+4*(t % 2), 39)
        if t > 0: MF(26, W2+4*(t-1), 40+4*((t-1) % 2), "0" if t == 1 else None)
    A("s_nop 1"); MF(26, W2+28, 44)
    A("s_nop 1")
    quad_store(26, H4, "s97" if dis else "s2")
    endp()
    if dis: A("""L_w5:
    s_cmp_lt_u32 s2, 112
    s_cbranch_scc1 L_w7
    s_barrier
    s_branch L_mlp0
    L_w7:
    s_cmp_ge_u32 s2, 72
    s_cbranch_scc1 L_end
    s_lshl_b32 s96, s2, 1
    s_bfe_u32 s67, s3, 0x10001
    s_add_u32 s96, s96, s67""")
    else: A("L_w5:\ns_cmp_ge_u32 s2, 144\ns_cbranch_scc1 L_end")
    A(f"""s_lshl_b32 s67, {CI}, 1
    v_add_u32 v53, s67, v53
    v_lshrrev_b32 v54, 4, v53
    v_lshlrev_b32 v54, 5, v54
    v_and_b32 v55, 7, v53
    v_add_u32 v54, v54, v55
    v_bfe_u32 v56, v53, 3, 1
    v_mul_u32_u24 v56, 576, v56
    v_add_u32 v56, v56, v54
    v_lshlrev_b32 v54, 1, v54
    v_lshlrev_b32 v57, 1, v56""")
    srd(20, 36, 2304); srd(28, 54, 1152)
    for r in range(4): A(f"buffer_load_ushort v{240+r}, v57, s[20:23], 0 offen offset:{16*r}\nbuffer_load_ushort v{244+r}, v54, s[28:31], 0 offen offset:{16*r}")
    A(f"""{SELU}
    v_lshlrev_b32 v61, 4, v1
    s_lshl_b32 s78, {CI}, 13
    s_add_u32 s81, s78, {H2}""")
    for u in range(1, 8): A(f"s_add_u32 s{81+u}, s81, {1024*u}")
    G = 200
    if seq: A("s_barrier")
    def ld2():
        for u in range(8): A(f"buffer_load_dwordx4 v[{G+4*u}:{G+4*u+3}], v61, s[12:15], s{81+u} offen sc1")
    poll(ld2, range(G+3, G+32, 4), 38)
    for u in range(8): unpack24(G+4*u)
    for u in (4, 2, 1):
        for j in range(4*u): A(f"v_add_f32 v{G+j}, v{G+j}, v{G+4*u+j}")
    quad_reduce(G)
    A(f"v_cvt_pk_bf16_f32 v{G}, v{G}, v{G+1}\nv_cvt_pk_bf16_f32 v{G+2}, v{G+2}, v{G+3}")
    for r in range(4): A(f"v_lshlrev_b32 v{240+r}, 16, v{240+r}")
    def unp(srcs, d):
        for i, x in enumerate(srcs): A(f"v_and_b32 v{d+2*i+1}, 0xffff0000, v{x}\nv_lshlrev_b32 v{d+2*i}, 16, v{x}")
    unp([G, G+2], G+4)
    for r in range(4): A(f"v_add_f32 v{240+r}, v{240+r}, v{G+4+r}")
    A(f"""v_cvt_pk_bf16_f32 v248, v240, v241
    v_cvt_pk_bf16_f32 v249, v242, v243
    v_mov_b32 v250, s80
    v_mov_b32 v251, s80
    s_lshl_b32 s67, {CI}, 5
    s_add_u32 s67, s67, {H3}
    s_mov_b64 exec, 3
    buffer_store_dwordx4 v[248:251], v61, s[12:15], s67 offen sc1
    s_mov_b64 exec, -1""")
    stamp(3)
    if wlate in (1, 3) and not dis: load_mlp(True, False)
    A(f"""{'' if dis else 's_branch L_mlp'}
    L_w5b:
    s_add_u32 s81, s78, {H4}""")
    for u in range(1, 5): A(f"s_add_u32 s{81+u}, s81, {1024*u}")
    stamp(5)
    def zero16():
        for j in range(3): A(f"v_mov_b32 v{G+16+j}, 0")
        A(f"v_mov_b32 v{G+19}, s80")
    zero16(); A(SELU)
    def ld4():
        for u in range(4): A(f"buffer_load_dwordx4 v[{G+4*u}:{G+4*u+3}], v61, s[12:15], s{81+u} offen sc1")
        A(f"s_mov_b32 exec_hi, 0\nbuffer_load_dwordx4 v[{G+16}:{G+19}], v61, s[12:15], s85 offen sc1\ns_mov_b32 exec_hi, -1")
    poll(ld4, range(G+3, G+20, 4), 38)
    for u in range(5): unpack24(G+4*u)
    for j in range(4): A(f"v_add_f32 v{G+j}, v{G+j}, v{G+16+j}")
    for u in (2, 1):
        for j in range(4*u): A(f"v_add_f32 v{G+j}, v{G+j}, v{G+4*u+j}")
    quad_reduce(G)
    A(f"v_cvt_pk_bf16_f32 v{G}, v{G}, v{G+1}\nv_cvt_pk_bf16_f32 v{G+2}, v{G+2}, v{G+3}")
    for r in range(4): A(f"v_lshlrev_b32 v{244+r}, 16, v{244+r}")
    unp([G, G+2], G+4)
    for r in range(4): A(f"v_add_f32 v{244+r}, v{244+r}, v{G+4+r}")
    A(f"v_cvt_pk_bf16_f32 v{G}, v244, v245\nv_cvt_pk_bf16_f32 v{G+2}, v246, v247")
    unp([248, 249], 240); unp([G, G+2], G+4)
    for r in range(4): A(f"v_add_f32 v{240+r}, v{240+r}, v{G+4+r}")
    A(f"v_cvt_pk_bf16_f32 v{G}, v240, v241\nv_cvt_pk_bf16_f32 v{G+2}, v242, v243")
    srd(20, 56, 2304)
    A(f"""s_mov_b64 exec, 3
    buffer_store_short v{G}, v57, s[20:23], 0 offen
    buffer_store_short_d16_hi v{G}, v57, s[20:23], 0 offen offset:16
    buffer_store_short v{G+2}, v57, s[20:23], 0 offen offset:32
    buffer_store_short_d16_hi v{G+2}, v57, s[20:23], 0 offen offset:48
    s_mov_b64 exec, -1""")
    stamp(6)
    A(f"""s_cmp_lg_u32 {CI}, 0
    s_cbranch_scc1 L_end
    v_mov_b32 v48, s80
    s_mov_b32 s67, {NONCE}
    s_mov_b64 exec, 1
    buffer_store_dword v48, v61, s[12:15], s67 offen
    s_mov_b64 exec, -1""")
    endp()
    A(f"""L_w6:
    {NOMLP}
    s_cbranch_scc1 L_end
    v_bfe_u32 v50, v2, 3, 1
    v_mul_u32_u24 v50, 1152, v50
    v_lshl_add_u32 v50, v3, 6, v50
    v_and_b32 v49, 7, v2
    v_lshl_add_u32 v50, v49, 1, v50""")
    for u in range(5): A(f"s_mov_b32 s{81+u}, {H3+1024*u}")
    zero16()
    if seq: A("s_barrier")
    poll(ld4, range(G+3, G+20, 4), 38)
    for u in range(5):
        A(f"v_and_b32 v{G+4*u+3}, 0xffff0000, v{G+4*u+1}\nv_lshlrev_b32 v{G+4*u+2}, 16, v{G+4*u+1}\nv_and_b32 v{G+4*u+1}, 0xffff0000, v{G+4*u}\nv_lshlrev_b32 v{G+4*u}, 16, v{G+4*u}")
    c32 = c8
    def lnsum(first):
        dppred("v_add_f32", [40], c8); swapred("v_add_f32", [40], 41, 16); swapred("v_add_f32", [40], 41, 32)
    A(f"v_add_f32 v40, v{G}, v{G+1}")
    for j in range(2, 20): A(f"v_add_f32 v40, v40, v{G+j}")
    lnsum(1)
    A(f"v_mul_f32 v40, {f2u(1/576)}, v40")
    for j in range(16): A(f"v_sub_f32 v{G+j}, v{G+j}, v40")
    A("s_mov_b32 exec_hi, 0")
    for j in range(16, 20): A(f"v_sub_f32 v{G+j}, v{G+j}, v40")
    A(f"s_mov_b32 exec_hi, -1\nv_mul_f32 v40, v{G}, v{G}")
    for j in range(1, 20): A(f"v_fmac_f32 v40, v{G+j}, v{G+j}")
    lnsum(0)
    A(f"v_mov_b32 v41, {f2u(1e-5)}\nv_fmac_f32 v41, {f2u(1/576)}, v40\nv_rsq_f32 v40, v41\ns_nop 0")
    for j in range(20): A(f"v_mul_f32 v{G+j}, v{G+j}, v40")
    for j in range(10): A(f"v_cvt_pk_bf16_f32 v{G+j}, v{G+2*j}, v{G+2*j+1}")
    for j in range(10):
        if j == 8: A("s_mov_b32 exec_hi, 0")
        o = L_XN + 256*(j//2) + 32*(j % 2)
        A(f"ds_write_b16 v50, v{G+j} offset:{o}\nds_write_b16_d16_hi v50, v{G+j} offset:{o+16}")
    A("s_mov_b32 exec_hi, -1\ns_waitcnt lgkmcnt(0)\ns_barrier")
    stamp(4)
    A("L_end:")
    if stamps:
        A(f"""s_cmp_eq_u32 s93, 0
        s_cbranch_scc1 L_exit
        v_lshlrev_b32 v62, 2, v1
        s_lshl_b32 s92, s2, 6
        s_add_u32 s92, s92, {STAMP}
        s_mov_b32 exec_lo, s93
        s_mov_b32 exec_hi, 0
        buffer_store_dword v63, v62, s[12:15], s92 offen""")
    A("L_exit:\ns_endpgm")
    A(f'''.section .rodata,"a"
    .p2align 6
    .amdhsa_kernel {NAME}_kernel
    .amdhsa_next_free_vgpr 256
    .amdhsa_next_free_sgpr 102
    .amdhsa_accum_offset 256
    .amdhsa_group_segment_fixed_size 0
    .amdhsa_kernarg_size 104
    .amdhsa_user_sgpr_count 2
    .amdhsa_user_sgpr_kernarg_segment_ptr 1
    .amdhsa_system_sgpr_workgroup_id_x 1
    .end_amdhsa_kernel''')
    if warm: L = add_pads(L, "L_tail:", "L_end:", warm)
    if ldpol: L = [(x.replace(" sc1", ["", " sc0 sc1", " sc1 nt", " sc0 sc1 nt"][ldpol]) if x.startswith("buffer_load") else x) for x in L]
    if stpol: L = [(x.replace(" sc1", ["", " sc0 sc1", " sc1 nt", " sc0 sc1 nt"][stpol]) if x.startswith("buffer_store") else x) for x in L]
    return "\n".join(L) + "\n"

if __name__ == "__main__":
    out = sys.argv[1]; kw = {}
    for a in sys.argv[2:]:
        k, v = a.split("="); kw[k] = int(v)
    ref = open("cdna_kernels/" + NAME + ".s.ref").read().split("\n") if not kw.get("stamps") else []
    hdr = "\n".join(l for l in ref if l.startswith(";") and "@launch" not in l)
    open(out, "w").write(gen(header=hdr, **kw))
```
